```python
import torch

def _softmax(x, axis=-1):
    return torch.softmax(x, dim=axis)
def _gelu(x):
    return torch.nn.functional.gelu(x, approximate="tanh")
def _silu(x):
    return torch.nn.functional.silu(x)
def _sigmoid(x):
    return torch.sigmoid(x)
def _layernorm(x, axis=-1, eps=1e-5):
    m = x.mean(dim=axis, keepdim=True)
    v = x.var(dim=axis, keepdim=True, unbiased=False)
    return (x - m) / torch.sqrt(v + eps)
def _scatter_add(tgt, idx, src, axis=0):
    return tgt.clone().index_add_(axis, idx, src)
def _segment_sum(src, seg, n):
    out = torch.zeros((n,) + src.shape[1:], dtype=src.dtype)
    return out.index_add_(0, seg, src)
def _pad(x, pw):
    flat = tuple(v for pair in reversed(pw) for v in pair)
    return torch.nn.functional.pad(x, flat)

kernel_name = 'parallel_sum__sliding_block__geglu_ffn__prompt'

def setup_inputs():

    _w = (lambda a: (lambda t: t.to(torch.bfloat16) if t.is_floating_point() else t)(torch.as_tensor(a)))
    def _A_setup():
        B, S, D = 1, 2048, 448
        return {
            "x": _w((lambda *s: torch.randn(*s, dtype=torch.bfloat16) * 0.05)(B, S, D)),
            "wqkv": _w((lambda *s: torch.randn(*s, dtype=torch.bfloat16) * 0.1)(D, 3 * D)),
            "wo": _w((lambda *s: torch.randn(*s, dtype=torch.bfloat16) * 0.05)(D, D)),
        }
    _A_in = _A_setup()

    def _B_setup():
        B, S, D, F = 1, 2048, 448, 1792
        return {
            "x": _w((lambda *s: torch.randn(*s, dtype=torch.bfloat16) * 0.05)(B, S, D)),
            "w_gate": _w((lambda *s: torch.randn(*s, dtype=torch.bfloat16) * 0.05)(D, F)),
            "w_up": _w((lambda *s: torch.randn(*s, dtype=torch.bfloat16) * 0.05)(D, F)),
            "w_down": _w((lambda *s: torch.randn(*s, dtype=torch.bfloat16) * 0.05)(F, D)),
        }
    _B_in = _B_setup()

    return {
        "A_x": _A_in["x"],
        "A_wqkv": _A_in["wqkv"],
        "A_wo": _A_in["wo"],
        "B_x": _B_in["x"],
        "B_w_gate": _B_in["w_gate"],
        "B_w_up": _B_in["w_up"],
        "B_w_down": _B_in["w_down"],
    }

def reference(A_x, A_wqkv, A_wo, B_x, B_w_gate, B_w_up, B_w_down):
    def _A_ref(x, wqkv, wo):
        B, S, D = x.shape
        H = 16; Dh = D // H; W = 256
        qkv = (lambda x, *d: x.permute(*d))((x @ wqkv).reshape(B, S, 3, H, Dh), 2, 0, 3, 1, 4)
        q, k, v = qkv[0], qkv[1], qkv[2]
        scores = torch.einsum("bhqd,bhkd->bhqk", q, k) * (Dh ** -0.5)
        idx = torch.arange(S)
        mask = (idx[:, None] - idx[None, :] >= 0) & (idx[:, None] - idx[None, :] < W)
        scores = torch.where(mask[None, None], scores, -1e9)
        p = _softmax(scores, axis=-1)
        o = torch.einsum("bhqk,bhkd->bhqd", p, v)
        return (lambda x, *d: x.permute(*d))(o, 0, 2, 1, 3).reshape(B, S, D) @ wo

    def _B_ref(x, w_gate, w_up, w_down):
        return (_gelu(x @ w_gate) * (x @ w_up)) @ w_down

    x = A_x
    xn = _layernorm(x, axis=-1)
    return x + _A_ref(xn, A_wqkv, A_wo) + _B_ref(xn, B_w_gate, B_w_up, B_w_down)
```

```python
import re

REG_RE = re.compile(r"^(-|\|)?(?:abs\()?([vas])(?:(\d+)|\[(\d+):(\d+)\])\)?\|?$")
TRANS = ("v_exp_f32", "v_log_f32", "v_rcp_f32", "v_rsq_f32", "v_sqrt_f32", "v_sin_f32", "v_cos_f32")


def regs_of(op):
    op = op.strip()
    if op == "vcc":
        return {("x", "vcc")}
    if op == "exec":
        return {("x", "exec")}
    if op == "m0":
        return {("x", "m0")}
    m = REG_RE.match(op)
    if not m:
        return set()
    k = m.group(2)
    if m.group(3) is not None:
        return {(k, int(m.group(3)))}
    return {(k, i) for i in range(int(m.group(4)), int(m.group(5)) + 1)}


def is_literal(op):
    op = op.strip()
    if regs_of(op):
        return False
    if op in ("off", "scc"):
        return False
    try:
        if op.startswith("0x") or op.startswith("-0x"):
            v = int(op, 16)
        elif re.match(r"^-?\d+$", op):
            v = int(op)
        else:
            f = float(op)
            return f not in (0.5, -0.5, 1.0, -1.0, 2.0, -2.0, 4.0, -4.0, 0.0)
        return not (-16 <= v <= 64)
    except ValueError:
        return True


VOP3_ONLY = ("v_fma_f32", "v_mul_lo_u32", "v_mul_hi_u32", "v_max3_f32", "v_min3_f32", "v_min3_u32", "v_med3_f32", "v_bfe_u32", "v_lshl_add_u32",
             "v_add_lshl_u32", "v_lshl_or_b32", "v_and_or_b32", "v_add3_u32", "v_or3_b32", "v_xad_u32", "v_perm_b32", "v_mad_u32_u24", "v_cvt_pk_bf16_f32",
             "v_readlane_b32", "v_writelane_b32", "v_bfi_b32", "v_alignbit_b32", "v_mbcnt_lo_u32_b32", "v_mbcnt_hi_u32_b32")


class Ins:
    __slots__ = ("text", "mn", "ops", "mods", "rd", "wr", "kind", "size", "passes", "srcA", "srcB", "srcC", "label")

    def __init__(self, text):
        self.text = text
        self.label = None
        t = text.split(";")[0].strip()
        if t.endswith(":"):
            self.kind = "label"
            self.label = t[:-1]
            self.size = 0
            self.rd = set(); self.wr = set(); self.mn = ""; self.ops = []
            return
        if t.startswith("."):
            self.kind = "dir"
            self.size = 0
            self.rd = set(); self.wr = set(); self.mn = ""; self.ops = []
            return
        parts = t.split(None, 1)
        mn = parts[0]
        rest = parts[1] if len(parts) > 1 else ""
        ops = [o.strip() for o in re.split(r",(?![^\[]*\])", rest)] if rest else []
        mods = ""
        if ops:
            last = ops[-1].split(None, 1)
            if len(last) > 1 and not mn.startswith("s_waitcnt"):
                ops[-1] = last[0]
                mods = last[1]
        self.mn = mn
        self.ops = ops
        self.mods = mods
        base = re.sub(r"_(e32|e64|dpp)$", "", mn)
        R = [regs_of(o) for o in ops]
        rd = set(); wr = set()
        self.passes = 0
        self.srcA = self.srcB = self.srcC = set()
        if base.startswith("v_mfma"):
            self.kind = "mfma"
            self.passes = 8 if "32x32x16" in base else 4
            wr = R[0]; self.srcA = R[1]; self.srcB = R[2]; self.srcC = R[3]
            rd = R[1] | R[2] | R[3]
            self.size = 8
        elif base.startswith("v_"):
            self.kind = "valu"
            if base.startswith("v_permlane") and "swap" in base:
                wr = R[0] | R[1]; rd = R[0] | R[1]
            elif base in ("v_fmac_f32", "v_dot2c_f32_bf16", "v_pk_fmac_f16"):
                wr = R[0]; rd = set().union(*R)
            elif base in ("v_add_co_u32", "v_sub_co_u32", "v_addc_co_u32", "v_subb_co_u32"):
                wr = R[0] | R[1]; rd = set().union(*R[2:])
            else:
                wr = R[0]; rd = set().union(*R[1:]) if len(R) > 1 else set()
            if mn.endswith("_dpp"):
                rd = rd | wr
                self.size = 8
            elif mn.endswith("_e64") or base in VOP3_ONLY or base.startswith("v_pk_") or base.startswith("v_dot2_") or base.startswith("v_accvgpr"):
                self.size = 8
            else:
                force = False
                if base.startswith("v_cmp") and ops[0] != "vcc":
                    force = True
                if base == "v_cndmask_b32" and ops[3] != "vcc":
                    force = True
                if any(o.startswith("-") and regs_of(o) or o.startswith("abs(") or o.startswith("|") for o in ops[1:]):
                    force = True
                if len(ops) >= 3 and not base.startswith("v_permlane"):
                    s1 = ops[3] if base in ("v_add_co_u32", "v_sub_co_u32", "v_addc_co_u32", "v_subb_co_u32") else ops[2]
                    if not any(k == "v" for k, _ in regs_of(s1)):
                        force = True
                if mods:
                    force = True
                self.size = 8 if force else (8 if any(is_literal(o) for o in ops[1:]) else 4)
        elif base.startswith("ds_"):
            self.kind = "ds"
            self.size = 8
            if base.startswith("ds_read") or base.startswith("ds_bpermute") or base.startswith("ds_swizzle"):
                wr = R[0]; rd = set().union(*R[1:])
            else:
                rd = set().union(*R)
        elif base.startswith("buffer_") or base.startswith("global_"):
            self.kind = "vmem"
            self.size = 8
            if "load" in base and " lds" not in (" " + mods) and "_lds_" not in base:
                wr = R[0]; rd = set().union(*R[1:])
            else:
                rd = set().union(*R)
                if "load" in base:
                    rd = rd | {("x", "m0")}
        elif base.startswith("s_"):
            self.kind = "salu"
            if base.startswith("s_load") or base in ("s_memtime", "s_memrealtime"):
                self.kind = "smem"
                self.size = 8
                wr = R[0]; rd = set().union(*R[1:]) if len(R) > 1 else set()
            elif base in ("s_waitcnt", "s_barrier", "s_nop", "s_branch", "s_endpgm", "s_sleep", "s_setprio") or base.startswith("s_cbranch"):
                self.size = 4
            elif base.startswith("s_cmp"):
                rd = set().union(*R)
                self.size = 4 if base.startswith("s_cmpk") else (8 if any(is_literal(o) for o in ops) else 4)
            else:
                wr = R[0]; rd = set().union(*R[1:]) if len(R) > 1 else set()
                if "saveexec" in base:
                    wr = wr | {("x", "exec")}
                if base in ("s_movk_i32", "s_addk_i32", "s_mulk_i32", "s_getreg_b32", "s_getpc_b64"):
                    self.size = 4
                else:
                    self.size = 8 if any(is_literal(o) for o in ops[1:]) else 4
        else:
            raise ValueError("unknown instr " + text)
        self.rd = rd
        self.wr = wr

    @property
    def base(self):
        return re.sub(r"_(e32|e64|dpp)$", "", self.mn)

    def states(self):
        if self.kind in ("label", "dir"):
            return 0
        if self.mn == "s_nop":
            return int(self.ops[0]) + 1
        return 1


class Wait:
    def __init__(self, kind, *tags):
        self.kind = kind
        self.tags = tags


class Tagged:
    def __init__(self, text, tag, maybe=False):
        self.text = text
        self.tag = tag
        self.maybe = maybe


class Asm:
    def __init__(self):
        self.ins = []
        self.vm = []
        self.lgkm = []
        self.vm_done = 0
        self.lgkm_done = 0
        self.maybe_depth = 0

    def emit(self, x):
        if isinstance(x, (list, tuple)):
            for y in x:
                self.emit(y)
            return
        if isinstance(x, Wait):
            self.wait(x.kind, *x.tags)
            return
        if callable(x):
            x(self)
            return
        tag = None
        maybe = self.maybe_depth > 0
        if isinstance(x, Tagged):
            tag = x.tag
            maybe = maybe or x.maybe
            x = x.text
        for line in x.split("\n"):
            line = line.strip()
            if not line:
                continue
            i = Ins(line)
            self.ins.append(i)
            if i.kind == "vmem":
                self.vm.append((tag, maybe))
            elif i.kind == "ds":
                self.lgkm.append((tag, maybe))
            elif i.kind == "smem":
                self.lgkm.append(("__smem", maybe))
            elif i.mn == "s_waitcnt":
                m = re.search(r"vmcnt\((\d+)\)", line)
                if m and int(m.group(1)) == 0 and not maybe:
                    self.vm_done = len(self.vm)
                m = re.search(r"lgkmcnt\((\d+)\)", line)
                if m and int(m.group(1)) == 0 and not maybe:
                    self.lgkm_done = len(self.lgkm)

    __call__ = emit

    def _count(self, lst, done, tags):
        last = -1
        for idx in range(len(lst) - 1, -1, -1):
            if lst[idx][0] in tags:
                last = idx
                break
        if last < done:
            return None, last
        n = sum(1 for k in range(last + 1, len(lst)) if not lst[k][1])
        return n, last

    def wait(self, kind, *tags):
        if kind == "vm":
            n, last = self._count(self.vm, self.vm_done, tags)
            if n is None:
                return
            n = min(n, 63)
            self.ins.append(Ins(f"s_waitcnt vmcnt({n})"))
            if self.maybe_depth == 0:
                self.vm_done = max(self.vm_done, last + 1)
        else:
            n, last = self._count(self.lgkm, self.lgkm_done, tags)
            if n is None:
                return
            if any(t == "__smem" for t, _ in self.lgkm[self.lgkm_done:]):
                n = 0
                last = len(self.lgkm) - 1
            n = min(n, 15)
            self.ins.append(Ins(f"s_waitcnt lgkmcnt({n})"))
            if self.maybe_depth == 0:
                self.lgkm_done = max(self.lgkm_done, last + 1)

    def maybe_begin(self):
        self.maybe_depth += 1

    def maybe_end(self):
        self.maybe_depth -= 1

    def fix_hazards(self):
        out = []
        nins = 0
        for cur in self.ins:
            if cur.kind in ("label", "dir"):
                out.append(cur)
                continue
            need = 0
            dist = 0
            for prev in reversed(out[-40:]):
                if prev.kind in ("label", "dir"):
                    continue
                req = hazard(prev, cur)
                if req > dist:
                    need = max(need, req - dist)
                dist += prev.states()
                if dist >= 20:
                    break
            while need > 0:
                k = min(need, 16)
                out.append(Ins(f"s_nop {k-1}"))
                nins += 1
                need -= k
            out.append(cur)
        self.ins = out
        return nins

    def fix_alignment(self):
        off = 0
        cand = None
        fixed = 0
        left = 0
        for idx, i in enumerate(self.ins):
            if i.kind == "dir" and i.text.strip().startswith(".p2align"):
                off = 0
                cand = None
                continue
            if i.size == 8 and off % 8 == 4:
                if cand is not None:
                    c = self.ins[cand]
                    mn = re.sub(r"_e32$", "", c.mn) + "_e64"
                    body = c.text.split(None, 1)[1]
                    self.ins[cand] = Ins(mn + " " + body)
                    off += 4
                    fixed += 1
                else:
                    left += 1
                cand = None
            if i.size == 4 and i.kind == "valu" and widenable(i):
                cand = idx
            elif i.size == 8:
                cand = None
            off += i.size
        return fixed, left

    def text(self):
        return "\n".join(("" if i.kind in ("label", "dir") else "  ") + i.text for i in self.ins) + "\n"

    def nbytes(self):
        return sum(i.size for i in self.ins)


def widenable(i):
    b = i.base
    if b.startswith("v_readfirstlane") or b.startswith("v_permlane") or b in ("v_nop", "v_fmac_f32", "v_dot2c_f32_bf16"):
        return False
    if b.startswith("v_fmamk") or b.startswith("v_fmaak"):
        return False
    return True


def vregs(s):
    return {r for r in s if r[0] in ("v", "a")}


def sregs(s):
    return {r for r in s if r[0] == "s" or r == ("x", "vcc")}


def hazard(p, c):
    req = 0
    if p.kind == "valu":
        w = vregs(p.wr)
        if c.kind == "mfma" and w & c.rd:
            req = max(req, 3 if p.base.startswith("v_dot2") else 2)
        if c.kind == "valu":
            if p.base in TRANS and c.base not in TRANS and w & c.rd:
                req = max(req, 1)
            if c.base in ("v_readlane_b32", "v_readfirstlane_b32") and w & c.rd:
                req = max(req, 1)
            if (c.mn.endswith("_dpp") or c.base.startswith("v_permlane")) and w & c.rd:
                req = max(req, 2)
            if p.base.startswith("v_dot2") and (w & (c.rd | c.wr)):
                if not (c.base == p.base and w == vregs(c.wr) and not (w & (regs_of(c.ops[1]) | regs_of(c.ops[2])))):
                    req = max(req, 3)
        if p.base.startswith("v_dot2") and c.kind in ("ds", "vmem") and w & c.rd:
            req = max(req, 3)
        if p.base in TRANS and c.kind in ("ds", "vmem") and w & c.rd:
            req = max(req, 1)
        sw = sregs(p.wr)
        if sw:
            if c.kind == "valu" and sw & c.rd:
                req = max(req, 4 if c.base in ("v_readlane_b32", "v_writelane_b32") else 2)
            if c.kind == "vmem" and sw & c.rd:
                req = max(req, 5)
            if c.kind in ("salu", "smem") and sw & c.rd:
                req = max(req, 1)
            if c.kind == "salu" and c.mn.startswith("s_cbranch_vcc") and ("x", "vcc") in sw:
                req = max(req, 1)
    if p.kind == "mfma":
        d = p.wr
        big = 12 if p.passes == 8 else 8
        if c.kind in ("valu", "ds", "vmem"):
            if d & (c.rd | c.wr):
                req = max(req, big)
        if c.kind == "mfma":
            if d & (c.srcA | c.srcB):
                req = max(req, big)
            if d & c.srcC:
                if not (d == c.srcC and p.passes == c.passes):
                    req = max(req, 10 if p.passes == 8 else 6)
            elif d & c.wr:
                req = max(req, 10 if p.passes == 8 else 6)
        if c.kind == "valu" and p.srcC & c.wr:
            req = max(req, 7 if p.passes == 8 else 3)
    if p.kind == "vmem" and "store" in p.base and ("x4" in p.base or "x3" in p.base):
        data = regs_of(p.ops[0]) if p.base.startswith("buffer") else regs_of(p.ops[1])
        if data & c.wr:
            req = max(req, 2 if c.kind in ("valu", "mfma") else 1)
    if p.kind == "salu" and ("x", "m0") in p.wr and c.kind == "vmem" and ("x", "m0") in c.rd:
        req = max(req, 1)
    if p.kind == "salu" and ("x", "exec") in p.wr and c.kind == "valu" and c.mn.endswith("_dpp"):
        req = max(req, 1)
    return req
```

```python
import sys, os, struct
sys.path.insert(0, os.path.dirname(os.path.abspath(__file__)))
from asmlib import Asm, Wait, Tagged, Ins

KNAME = "parallel_sum__sliding_block__geglu_ffn__prompt_kernel"

FLAGS = 0x0
STATS = 0x8000
CS = 0x10000
QKV = 0x80000
OBUF = 0x600000
HBUF = 0x800000
TSB = 0x1000000
WS_BYTES = 0x1100000
OOB = 0x3ffffff0

SLOT = 16384


def f32(x):
    return "0x%08x" % struct.unpack("<I", struct.pack("<f", x))[0]


class G:
    def __init__(self, stop_after=None, ts=False, budget=24):
        self.a = Asm()
        self.stop_after = stop_after
        self.ts = ts
        self.budget = budget
        self.nlabel = 0
        self.tsn = 0

    def label(self, s):
        self.nlabel += 1
        return f"L_{s}_{self.nlabel}"

    def stamp(self):
        if not self.ts:
            return
        n = self.tsn
        self.tsn += 1
        assert n < 16
        self.a(f"s_memtime s[{84 + (n % 8) * 2}:{85 + (n % 8) * 2}]") if False else None
        self.a("s_memtime s[98:99]")
        self.a("s_waitcnt lgkmcnt(0)")
        self.a(f"v_writelane_b32 v{self.vTS}, s98, {n}")

    def build(self):
        a = self.a
        sW, sRB, sC, sRG, sCG = 3, 4, 5, 6, 7
        SX, SWS, SP1, SP2, SP3, SH1, SDBG, SWD, SWO, SOUT, SQ2 = "s[8:11]", "s[12:15]", "s[16:19]", "s[20:23]", "s[24:27]", "s[28:31]", "s[32:35]", "s[36:39]", "s[40:43]", "s[44:47]", "s[84:87]"
        sKL = 48
        sSTR1 = 55
        sWB = 56
        sT0, sT1, sT2, sT3 = 57, 58, 59, 60
        sTYPEC = 61
        sPAIR1, sPAIR3, sL1, sL2 = 62, 63, 88, 89
        sW1off, sW2off, sW3off = 90, 91, 92
        sSO = 93
        sSPIN = 94
        sID = 95
        sH0, sH1o = 96, 97
        P = 64

        vL = 1
        vXo = [2, 3, 4, 5]
        vW1o = [6, 7, 8, 9]
        vW2o = [10, 11, 12, 13]
        vW3o = [14, 15, 16, 17]
        vXr = [[18 + 4 * k + q for q in range(4)] for k in range(3)]
        vWr = [[30 + 2 * k + u for u in range(2)] for k in range(3)]
        vW1r = [36, 37, 38]
        vFlag = 39
        vQst = 40
        vL16 = 41
        vHalf = 42
        vT = list(range(48, 80))
        self.vTS = 43
        WF = 80
        ACC2 = 96
        ACC1 = 128
        ACC3 = 192
        vK0 = [44, 45]; vK1 = [46, 47]; vINV = [48, 49]; vRS = [50, 51]
        vBp = [18, 22]
        vAp3 = [26, 2]

        def acc(base, u, t):
            r = base + (u * 2 + t) * 16
            return f"v[{r}:{r+15}]", r

        def xfrag(ks, t):
            r = (ks * 2 + t) * 4
            return f"a[{r}:{r+3}]"

        def win(addr):
            return addr // 65536, addr % 65536

        a(f".p2align 8")
        a(f"{KNAME}:")
        a("s_cmp_ge_u32 s2, 256")
        a("s_cbranch_scc1 L_end")
        a(f"s_load_dwordx16 s[{P}:{P+15}], s[0:1], 0")
        a(f"s_load_dwordx4 s[{P+16}:{P+19}], s[0:1], 64")
        a("s_getpc_b64 s[84:85]")
        a("L_pc:")
        a("s_mov_b32 s86, L_codeend-L_pc")
        a("s_mov_b32 s87, 0x20000")
        a("v_lshlrev_b32 v44, 7, v0")
        a("buffer_load_dword v45, v44, s[84:87], 0 offen")
        a(f"v_and_b32 v{vL}, 63, v0")
        a("v_lshrrev_b32 v46, 6, v0")
        a(f"v_readfirstlane_b32 s{sW}, v46")
        if self.ts:
            a(f"v_mov_b32 v{self.vTS}, 0")
        a(f"s_and_b32 s{sT0}, s2, 7")
        a(f"s_lshr_b32 s{sT1}, s2, 3")
        a(f"s_and_b32 s{sRB}, s{sT0}, 1")
        a(f"s_lshl_b32 s{sRB}, s{sRB}, 3")
        a(f"s_and_b32 s{sT2}, s{sT1}, 7")
        a(f"s_add_u32 s{sRB}, s{sRB}, s{sT2}")
        a(f"s_lshr_b32 s{sC}, s{sT0}, 1")
        a(f"s_lshr_b32 s{sT2}, s{sT1}, 3")
        a(f"s_mul_i32 s{sT3}, s{sC}, 3")
        a(f"s_add_u32 s{sT3}, s{sT3}, s{sT2}")
        a(f"s_lshl_b32 s{sPAIR1}, s{sT3}, 1")
        a(f"s_add_u32 s{sPAIR3}, s{sPAIR1}, 1")
        a(f"s_mov_b32 s{sL2}, s{sT3}")
        a(f"s_lshl_b32 s{sL1}, s{sC}, 1")
        a(f"s_add_u32 s{sL1}, s{sL1}, 13")
        a(f"s_cmp_eq_u32 s{sC}, 0")
        a(f"s_cselect_b32 s{sL1}, 12, s{sL1}")
        a(f"s_add_u32 s{sT0}, s{sC}, 24")
        a(f"s_cmp_eq_u32 s{sT2}, 3")
        a(f"s_cselect_b32 s{sTYPEC}, 1, 0")
        a(f"s_cselect_b32 s{sPAIR3}, s{sT0}, s{sPAIR3}")
        a(f"s_cselect_b32 s{sL2}, 14, s{sL2}")
        a(f"s_lshl_b32 s{sC}, s{sC}, 2")
        a(f"s_add_u32 s{sC}, s{sC}, s{sT2}")
        a(f"s_lshl_b32 s{sID}, s{sRB}, 4")
        a(f"s_add_u32 s{sID}, s{sID}, s{sC}")
        a(f"s_and_b32 s{sRG}, s{sW}, 1")
        a(f"s_lshr_b32 s{sCG}, s{sW}, 1")
        a(f"s_lshl_b32 s{sWB}, s{sW}, 12")
        a(f"s_lshl_b32 s{sT0}, s{sC}, 1")
        a(f"s_add_u32 s{sT0}, s{sT0}, s{sRB}")
        a(f"s_mul_i32 s{sT1}, s{sT0}, 37")
        a(f"s_lshr_b32 s{sT1}, s{sT1}, 8")
        a(f"s_mul_i32 s{sT1}, s{sT1}, 7")
        a(f"s_sub_u32 s{sKL}, s{sT0}, s{sT1}")
        for i in range(1, 7):
            a(f"s_add_u32 s{sKL+i}, s{sKL+i-1}, 1")
            a(f"s_cmp_eq_u32 s{sKL+i}, 7")
            a(f"s_cselect_b32 s{sKL+i}, 0, s{sKL+i}")
        t0, t1, t2, t3, t4, t5 = vT[4:10]
        a(f"v_lshlrev_b32 v{vL16}, 4, v{vL}")
        a(f"v_lshrrev_b32 v{vHalf}, 5, v{vL}")
        a(f"v_lshrrev_b32 v{t0}, 3, v{vL}")
        a(f"v_and_b32 v{t1}, 7, v{vL}")
        a(f"v_lshrrev_b32 v{t2}, 4, v{vL}")
        a(f"s_lshl_b32 s{sT0}, s{sRB}, 7")
        a(f"s_lshl_b32 s{sT1}, s{sW}, 5")
        a(f"s_add_u32 s{sT0}, s{sT0}, s{sT1}")
        a(f"s_mul_i32 s{sT0}, s{sT0}, 896")
        a(f"v_mul_u32_u24 v{t3}, 896, v{t0}")
        a(f"v_add_u32 v{t3}, s{sT0}, v{t3}")
        a(f"v_xor_b32 v{t4}, v{t1}, v{t2}")
        a(f"v_lshl_add_u32 v{vXo[0]}, v{t4}, 4, v{t3}")
        a(f"v_xor_b32 v{t4}, 4, v{t4}")
        a(f"v_lshl_add_u32 v{vXo[1]}, v{t4}, 4, v{t3}")
        a(f"v_add_u32 v{vXo[1]}, {8*896-1024}, v{vXo[1]}")
        a(f"v_add_u32 v{vXo[2]}, {2*(8*896-1024)}, v{vXo[0]}")
        a(f"v_add_u32 v{vXo[3]}, {2*(8*896-1024)}, v{vXo[1]}")
        a("s_waitcnt lgkmcnt(0)")
        a(f"s_mov_b32 s8, s{P}\ns_mov_b32 s9, s{P+1}\ns_mov_b32 s10, {2048*896}\ns_mov_b32 s11, 0x20000")
        a(f"s_mov_b32 s12, s{P+18}\ns_mov_b32 s13, s{P+19}\ns_mov_b32 s14, {WS_BYTES}\ns_mov_b32 s15, 0x20000")

        def dma_item(kind, idx, slot):
            base = slot * SLOT
            if kind == "X":
                pre = [f"s_lshl_b32 s{sSO}, s{sKL+idx}, 7", f"s_add_u32 m0, s{sWB}, {base}"]
                vo, srd = vXo, SX
            elif kind == "a":
                pre = [f"s_mul_i32 s{sSO}, s{sKL+idx}, s{sSTR1}", f"s_lshl_b32 s{sSO}, s{sSO}, 6", f"s_add_u32 s{sSO}, s{sSO}, s{sW1off}", f"s_add_u32 m0, s{sWB}, {base}"]
                vo, srd = vW1o, SP1
            elif kind == "c":
                pre = [f"s_mul_i32 s{sSO}, s{sKL+idx}, {64*3584}", f"s_add_u32 s{sSO}, s{sSO}, s{sW3off}", f"s_add_u32 m0, s{sWB}, {base}"]
                vo, srd = vW3o, SP3
            elif kind == "b":
                k0 = f"s{sKL+2*idx}"
                k1 = f"s{sKL+2*idx+1}" if 2 * idx + 1 < 7 else "64"
                pre = [f"s_cmp_eq_u32 s{sCG}, 0", f"s_cselect_b32 s{sSO}, {k0}, {k1}", f"s_mul_i32 s{sSO}, s{sSO}, {64*2688}",
                       f"s_add_u32 s{sSO}, s{sSO}, s{sW2off}", f"s_add_u32 m0, s{sWB}, {base}"]
                vo, srd = vW2o, SP2
            tag = f"{kind}{idx}"
            atoms = []
            for o in range(4):
                ld = Tagged(f"buffer_load_dwordx4 v{vo[o]}, {srd}, s{sSO} offen offset:{o*1024} lds", tag)
                atoms.append((pre if o == 0 else []) + [ld])
            return atoms

        a(f"v_lshlrev_b32 v{t3}, 7, v0")
        a("s_cmp_eq_u32 s2, 0")
        a(f"s_cselect_b32 s{sT0}, {FLAGS}, {OOB}")
        a(f"v_mov_b32 v{ACC3}, 0\nv_mov_b32 v{ACC3+1}, 0\nv_mov_b32 v{ACC3+2}, 0\nv_mov_b32 v{ACC3+3}, 0")
        a(f"buffer_store_dwordx4 v[{ACC3}:{ACC3+3}], v{t3}, {SWS}, s{sT0} offen sc1")
        ST = ACC3 + 4
        a(f"s_lshl_b32 s{sT0}, s{sRB}, 7\ns_lshl_b32 s{sT1}, s{sC}, 3\ns_add_u32 s{sT0}, s{sT0}, s{sT1}\ns_lshl_b32 s{sT1}, s{sW}, 1\ns_add_u32 s{sT0}, s{sT0}, s{sT1}")
        vSR = vT[10]
        vL31 = vT[11]
        a(f"v_add_u32 v{vSR}, s{sT0}, v{vHalf}")
        a(f"v_and_b32 v{vL31}, 31, v{vL}")
        a(f"v_mul_u32_u24 v{t5}, 896, v{vSR}")
        a(f"v_lshl_add_u32 v{t5}, v{vL31}, 5, v{t5}")
        a(f"v_mov_b32 v{t3}, {OOB}")
        a(f"v_cmp_gt_u32 vcc, 28, v{vL31}")
        a(f"v_cndmask_b32 v{t5}, v{t3}, v{t5}, vcc")
        a(Tagged(f"buffer_load_dwordx4 v[{ST}:{ST+3}], v{t5}, {SX}, 0 offen", "t0x"))
        a(Tagged(f"buffer_load_dwordx4 v[{ST+4}:{ST+7}], v{t5}, {SX}, 0 offen offset:16", "t0x"))
        a(f"s_cmp_eq_u32 s{sCG}, 0")
        a(f"s_cselect_b32 s24, s{P+8}, s{P+10}\ns_cselect_b32 s25, s{P+9}, s{P+11}")
        a(f"s_add_u32 s{sT0}, s{sL1}, s{sCG}")
        a(f"s_cmp_eq_u32 s{sTYPEC}, 1")
        a(f"s_cselect_b32 s16, s{P+2}, s24\ns_cselect_b32 s17, s{P+3}, s25")
        a(f"s_cselect_b32 s{sT0}, s{sT0}, s{sPAIR1}")
        a(f"s_movk_i32 s{sSTR1}, 3584")
        a(f"s_cselect_b32 s{sSTR1}, 2688, s{sSTR1}")
        a(f"s_lshl_b32 s{sT0}, s{sT0}, 7")
        a(f"s_add_u32 s16, s16, s{sT0}\ns_addc_u32 s17, s17, 0")
        a(f"s_mul_i32 s18, s{sSTR1}, 448\ns_sub_u32 s18, s18, s{sT0}\ns_mov_b32 s19, 0x20000")
        a(f"s_mul_i32 s{sW1off}, s{sSTR1}, s{sRG}\ns_lshl_b32 s{sW1off}, s{sW1off}, 5")
        a(f"v_and_b32 v{t3}, 1, v{t2}")
        a(f"v_lshlrev_b32 v{t3}, 1, v{t3}")
        a(f"v_xor_b32 v{t3}, v{t1}, v{t3}")
        a(f"s_lshl_b32 s{sT1}, s{sCG}, 2")
        a(f"v_xor_b32 v{t4}, s{sT1}, v{t3}")
        a(f"v_mul_lo_u32 v{t5}, v{t0}, s{sSTR1}")
        a(f"v_lshl_add_u32 v{vW1o[0]}, v{t4}, 4, v{t5}")
        a(f"s_lshl_b32 s{sT1}, s{sSTR1}, 3\ns_sub_u32 s{sT1}, s{sT1}, 1024")
        for o in range(1, 4):
            a(f"v_add_u32 v{vW1o[o]}, s{sT1}, v{vW1o[o-1]}")
        a(f"s_lshl_b32 s{sT0}, s{sPAIR3}, 7")
        a(f"s_add_u32 s24, s24, s{sT0}\ns_addc_u32 s25, s25, 0")
        a(f"s_sub_u32 s26, {448*3584}, s{sT0}\ns_mov_b32 s27, 0x20000")
        a(f"s_lshl_b32 s{sT0}, s{sL2}, 7")
        a(f"s_add_u32 s20, s{P+2}, s{sT0}\ns_addc_u32 s21, s{P+3}, 0")
        a(f"s_sub_u32 s22, {448*2688}, s{sT0}\ns_mov_b32 s23, 0x20000")
        a(f"s_mul_i32 s{sW2off}, s{sRG}, {32*2688}\ns_mul_i32 s{sW3off}, s{sRG}, {32*3584}")
        a(f"v_mul_u32_u24 v{t5}, 3584, v{t0}")
        a(f"v_lshl_add_u32 v{vW3o[0]}, v{t4}, 4, v{t5}")
        a(f"v_mul_u32_u24 v{t5}, 2688, v{t0}")
        a(f"v_lshl_add_u32 v{vW2o[0]}, v{t3}, 4, v{t5}")
        for o in range(1, 4):
            a(f"v_add_u32 v{vW3o[o]}, {o*(8*3584-1024)}, v{vW3o[0]}")
            a(f"v_add_u32 v{vW2o[o]}, {o*(8*2688-1024)}, v{vW2o[0]}")
        T0A, T0B = 8 * SLOT, 9 * SLOT
        a(f"s_lshl_b32 s{sT0}, s{sRB}, 1\ns_add_u32 s{sT0}, s{sT0}, s{sRG}\ns_lshl_b32 s{sT0}, s{sT0}, 4")
        a(f"s_lshl_b32 s{sT1}, s{sCG}, 13\ns_lshl_b32 s{sT2}, s{sRG}, 11\ns_add_u32 s{sT1}, s{sT1}, s{sT2}")
        a(f"s_mul_i32 s{sSO}, s{sT0}, s{sSTR1}")
        a(f"s_add_u32 m0, s{sT1}, {T0A}")
        for o in range(2):
            a(Tagged(f"buffer_load_dwordx4 v{vW1o[o]}, {SP1}, s{sSO} offen offset:{o*1024} lds", "t0"))
        a(f"s_mul_i32 s{sSO}, s{sT0}, 3584")
        a(f"s_add_u32 m0, s{sT1}, {T0A+4096}")
        for o in range(2):
            a(Tagged(f"buffer_load_dwordx4 v{vW3o[o]}, {SP3}, s{sSO} offen offset:{o*1024} lds", "t0"))
        a(f"s_lshl_b32 s{sT0}, s{sRB}, 2\ns_add_u32 s{sT0}, s{sT0}, s{sW}\ns_mul_i32 s{sSO}, s{sT0}, {8*2688}")
        a(f"s_lshl_b32 s{sT1}, s{sW}, 10")
        a(f"s_add_u32 m0, s{sT1}, {T0B}")
        a(Tagged(f"buffer_load_dwordx4 v{vW2o[0]}, {SP2}, s{sSO} offen lds", "t0"))
        for (k, i, s) in (("X", 0, 0), ("a", 0, 5), ("X", 1, 1), ("a", 1, 6), ("X", 2, 2), ("a", 2, 7), ("X", 3, 3), ("X", 4, 4)):
            for at in dma_item(k, i, s): a(at)
        a(f"v_lshrrev_b32 v{t3}, 1, v{vL31}\nv_and_b32 v{t3}, 7, v{t3}")
        a(f"v_xor_b32 v{t3}, v{t3}, v{vHalf}")
        a(f"s_lshl_b32 s{sT0}, s{sRG}, 13")
        a(f"v_lshlrev_b32 v{t4}, 7, v{vL31}\nv_add_u32 v{t4}, s{sT0}, v{t4}")
        for q in range(4):
            a(f"v_xor_b32 v{t5}, {2*q}, v{t3}")
            a(f"v_lshl_add_u32 v{vXr[0][q]}, v{t5}, 4, v{t4}")
            a(f"v_add_u32 v{vXr[1][q]}, 0x10000, v{vXr[0][q]}")
            a(f"v_add_u32 v{vXr[2][q]}, 0x20000, v{vXr[0][q]}")
        tS, tB = vT[12], vT[13]
        a(f"v_and_b32 v{tS}, 1, v{t2}")
        a(f"v_bfe_u32 v{t3}, v{vL}, 2, 2")
        a(f"v_lshl_add_u32 v{t3}, v{vHalf}, 3, v{t3}")
        a(f"v_lshlrev_b32 v{t3}, 7, v{t3}")
        a(f"v_and_b32 v{t4}, 3, v{vL}")
        a(f"v_lshl_add_u32 v{tB}, v{t4}, 3, v{t3}")
        a(f"v_bfe_u32 v{t3}, v{vL}, 3, 1")
        a(f"v_lshl_or_b32 v{t3}, v{tS}, 1, v{t3}")
        a(f"v_lshl_add_u32 v{t4}, v{tS}, 13, v{tB}")
        a(f"s_lshl_b32 s{sT0}, s{sCG}, 1")
        for u in range(2):
            if u: a(f"s_add_u32 s{sT0}, s{sT0}, 1")
            a(f"v_xor_b32 v{t5}, s{sT0}, v{t3}")
            a(f"v_lshl_add_u32 v{vWr[0][u]}, v{t5}, 5, v{t4}")
            a(f"v_add_u32 v{vWr[1][u]}, 0x10000, v{vWr[0][u]}")
            a(f"v_add_u32 v{vWr[2][u]}, 0x20000, v{vWr[0][u]}")
        a(f"v_xor_b32 v{t5}, s{sCG}, v{t3}")
        a(f"v_lshl_add_u32 v{vW1r[0]}, v{t5}, 5, v{tB}")
        a(f"v_add_u32 v{vW1r[1]}, 0x10000, v{vW1r[0]}")
        a(f"v_add_u32 v{vW1r[2]}, 0x20000, v{vW1r[0]}")
        a(f"s_lshl_b32 s{sT0}, s{sID}, 7\ns_lshl_b32 s{sT1}, s{sW}, 2\ns_add_u32 s{sT0}, s{sT0}, s{sT1}")
        a(f"v_mov_b32 v{t3}, {OOB}\nv_mov_b32 v{t4}, s{sT0}")
        a(f"v_cmp_eq_u32 vcc, 0, v{vL}")
        a(f"v_cndmask_b32 v{vFlag}, v{t3}, v{t4}, vcc")
        a(f"s_lshl_b32 s{sT0}, s{sRB}, 10\ns_lshl_b32 s{sT1}, s{sRG}, 9\ns_add_u32 s{sT0}, s{sT0}, s{sT1}")
        a(f"v_lshlrev_b32 v{t3}, 3, v{vL31}\nv_add_u32 v{t3}, s{sT0}, v{t3}")
        a(f"v_lshl_add_u32 v{vQst}, v{vHalf}, 14, v{t3}")
        a(f"s_mov_b32 s32, s{P+16}\ns_mov_b32 s33, s{P+17}\ns_mov_b32 s34, 256\ns_mov_b32 s35, 0x20000")
        a(f"s_mov_b32 s28, s{P+18}\ns_mov_b32 s29, s{P+19}\ns_mov_b32 s31, 0x20000")
        a(f"s_cmp_eq_u32 s{sTYPEC}, 1\ns_cselect_b32 s30, 0, {WS_BYTES}")
        a(f"s_mov_b32 s84, s{P+18}\ns_mov_b32 s85, s{P+19}\ns_mov_b32 s87, 0x20000")
        a(f"s_cmp_eq_u32 s{sC}, 3\ns_cselect_b32 s86, {WS_BYTES}, s30")
        self.stamp()

        def poll_check(tag, vreg_ready_cmp, reload):
            lok, lsp = self.label("ok"), self.label("spin")

            def f(A):
                A.wait("vm", tag)
                A(vreg_ready_cmp)
                A(f"s_cbranch_vccz {lok}")
                A.maybe_begin()
                A(f"s_mov_b32 s{sSPIN}, 0")
                A(f"{lsp}:")
                A("s_sleep 1")
                A(reload)
                A(f"s_add_u32 s{sSPIN}, s{sSPIN}, 1")
                A("s_waitcnt vmcnt(0)")
                A(vreg_ready_cmp)
                A(f"s_cmp_gt_u32 s{sSPIN}, 0x20000")
                A(f"s_cbranch_scc1 {lok}")
                A(f"s_cbranch_vccnz {lsp}")
                A.maybe_end()
                A(f"{lok}:")
                A("s_nop 1")
            return f

        def flag_store(val, vtmp):
            return [f"v_mov_b32 v{vtmp}, {val}", f"buffer_store_dword v{vtmp}, v{vFlag}, {SWS}, 0 offen sc1"]

        def t0_job():
            J = []
            FR = ACC3 + 16
            DD = ACC2
            SEL = ACC2 + 20
            u = [ACC2 + 24 + i for i in range(8)]
            wk, off = win(T0A)
            srcs = [(vWr[wk][0], off), (vWr[wk][1], off), (vWr[wk][0], off + 4096), (vWr[wk][1], off + 4096), (vW1r[win(T0B)[0]], win(T0B)[1])]
            J.append([f"v_lshrrev_b32 v{u[0]}, 4, v{vL}", f"v_lshrrev_b32 v{u[1]}, 2, v{vL}", f"v_xor_b32 v{u[0]}, v{u[0]}, v{u[1]}", f"v_and_b32 v{u[0]}, 1, v{u[0]}"])
            J.append([f"v_cmp_eq_u32 vcc, 0, v{u[0]}", f"v_mov_b32 v{u[1]}, 0x3f803f80", f"v_cndmask_b32 v{SEL}, 0, v{u[1]}, vcc"])
            J.append([f"v_mov_b32 v{SEL+1}, v{SEL}", f"v_mov_b32 v{SEL+2}, v{SEL}", f"v_mov_b32 v{SEL+3}, v{SEL}"])
            J.append([Wait("vm", "t0x")])
            X = [ACC3 + 56 + i for i in range(8)]
            for i in range(8):
                J.append([f"v_lshlrev_b32 v{X[i]}, 16, v{ST+i}", f"v_and_b32 v{ST+i}, 0xffff0000, v{ST+i}"])
            vals = X + [ST + i for i in range(8)]
            s, s2, tt = u[2], u[3], u[4]
            J.append([f"v_add_f32 v{s}, v{vals[0]}, v{vals[1]}", f"v_add_f32 v{s2}, v{vals[2]}, v{vals[3]}"])
            for i in range(4, 16, 2):
                J.append([f"v_add_f32 v{s}, v{s}, v{vals[i]}", f"v_add_f32 v{s2}, v{s2}, v{vals[i+1]}"])
            J.append([f"v_add_f32 v{s}, v{s}, v{s2}"])

            def red(r):
                o = []
                for m in ("quad_perm:[1,0,3,2]", "quad_perm:[2,3,0,1]", "row_half_mirror", "row_mirror"):
                    o.append([f"v_add_f32_dpp v{r}, v{r}, v{r} {m} row_mask:0xf bank_mask:0xf"])
                o.append([f"v_mov_b32 v{tt}, v{r}", f"v_permlane16_swap_b32 v{tt}, v{r}", f"v_add_f32 v{r}, v{r}, v{tt}"])
                return o
            J += red(s)
            J.append([f"v_mul_f32 v{s}, {f32(1.0/448)}, v{s}"])
            for i in range(16):
                J.append([f"v_sub_f32 v{vals[i]}, v{vals[i]}, v{s}"])
            J.append([f"v_mul_f32 v{s2}, v{vals[0]}, v{vals[0]}", f"v_mul_f32 v{tt}, v{vals[1]}, v{vals[1]}"])
            for i in range(2, 16, 2):
                J.append([f"v_fmac_f32 v{s2}, v{vals[i]}, v{vals[i]}", f"v_fmac_f32 v{tt}, v{vals[i+1]}, v{vals[i+1]}"])
            J.append([f"v_add_f32 v{s2}, v{s2}, v{tt}", f"v_cmp_gt_u32 vcc, 28, v{vL31}", f"v_cndmask_b32 v{s2}, 0, v{s2}, vcc"])
            J += red(s2)
            o0, o1 = u[6], u[7]
            J.append([f"v_mul_f32 v{s2}, {f32(1.0/448)}, v{s2}", f"v_cvt_pk_bf16_f32 v{o0}, -v{s}, -v{s}", f"v_cvt_pk_bf16_f32 v{s2}, v{s2}, v{s2}"])
            J.append([f"v_and_b32 v{s2}, 0xffff0000, v{s2}", f"v_add_f32 v{s2}, {f32(1e-5)}, v{s2}", f"v_cvt_pk_bf16_f32 v{s2}, v{s2}, v{s2}"])
            J.append([f"v_and_b32 v{s2}, 0xffff0000, v{s2}", f"v_sqrt_f32 v{s2}, v{s2}"])
            J.append([f"v_cvt_pk_bf16_f32 v{s2}, v{s2}, v{s2}", f"v_and_b32 v{s2}, 0xffff0000, v{s2}", f"v_rcp_f32 v{o1}, v{s2}"])
            J.append([f"v_lshlrev_b32 v{tt}, 3, v{vSR}", f"v_mov_b32 v{s}, {OOB}", f"v_cmp_eq_u32 vcc, 0, v{vL31}", f"v_cndmask_b32 v{tt}, v{s}, v{tt}, vcc"])
            J.append([f"s_mov_b32 s{sT3}, {STATS}", Tagged(f"buffer_store_dwordx2 v[{o0}:{o1}], v{tt}, {SWS}, s{sT3} offen sc1", "t0s")])
            J.append([Wait("vm", "t0"), "s_barrier"])
            for k2 in range(2):
                for i, (vr, o) in enumerate(srcs):
                    r = FR + (k2 * 5 + i) * 4
                    J.append([Tagged(f"ds_read_b64_tr_b16 v[{r}:{r+1}], v{vr} offset:{o + k2*2048}", "t0r"),
                              Tagged(f"ds_read_b64_tr_b16 v[{r+2}:{r+3}], v{vr} offset:{o + k2*2048 + 512}", "t0r")])
            J.append([Wait("lgkm", "t0r")])
            for k2 in range(2):
                for i in range(5):
                    r = FR + (k2 * 5 + i) * 4
                    d = DD + i * 4
                    c = "0" if k2 == 0 else f"v[{d}:{d+3}]"
                    J.append([f"v_mfma_f32_16x16x32_bf16 v[{d}:{d+3}], v[{SEL}:{SEL+3}], v[{r}:{r+3}], {c}"])
            J.append([f"v_mov_b32 v{DD+1}, v{DD+4}", f"v_mov_b32 v{DD+2}, v{DD+8}", f"v_mov_b32 v{DD+3}, v{DD+12}"])
            J.append([f"s_lshl_b32 s{sT2}, s{sC}, 4", f"s_add_u32 s{sT2}, s{sT2}, s{sRB}", f"s_lshl_b32 s{sT2}, s{sT2}, 1", f"s_add_u32 s{sT2}, s{sT2}, s{sCG}",
                      f"s_mul_i32 s{sT2}, s{sT2}, 640", f"s_add_u32 s{sT2}, s{sT2}, {CS}"])
            J.append([f"v_cmp_gt_u32 vcc, 32, v{vL}", f"v_lshlrev_b32 v{tt}, 2, v{vL}", f"v_cndmask_b32 v{tt}, v{s}, v{tt}, vcc", f"v_cndmask_b32 v{s2}, v{s}, v{vL16}, vcc"])
            J.append([f"s_cmp_eq_u32 s{sRG}, 0", f"s_cselect_b32 s{sT3}, s{sT2}, {OOB}", Tagged(f"buffer_store_dwordx4 v[{DD}:{DD+3}], v{s2}, {SWS}, s{sT3} offen sc1", "t0s")])
            J.append([f"s_cmp_eq_u32 s{sRG}, 1", f"s_cselect_b32 s{sT3}, s{sT2}, {OOB}", Tagged(f"buffer_store_dword v{DD+16}, v{tt}, {SWS}, s{sT3} offen offset:512 sc1", "t0s")])
            return J

        def f_epi(base, srd, s_off, temps, packed, tag):
            J = []
            for u in range(2):
                for t in range(2):
                    _, r = acc(base, u, t)
                    T = temps
                    if not packed:
                        for j in range(0, 8, 2):
                            g0, g1, b0, b1 = r + j, r + j + 1, r + 8 + j, r + 9 + j
                            x0, x1 = T[0], T[1]
                            J.append([f"v_mul_f32 v{x0}, v{g0}, v{g0}", f"v_mul_f32 v{x1}, v{g1}, v{g1}"])
                            J.append([f"v_fma_f32 v{x0}, v{x0}, v{vK1[t]}, v{vK0[t]}", f"v_fma_f32 v{x1}, v{x1}, v{vK1[t]}, v{vK0[t]}"])
                            J.append([f"v_mul_f32 v{x0}, v{x0}, v{g0}", f"v_mul_f32 v{x1}, v{x1}, v{g1}"])
                            J.append([f"v_exp_f32 v{x0}, v{x0}"])
                            J.append([f"v_exp_f32 v{x1}, v{x1}"])
                            J.append([f"v_mul_f32 v{g0}, v{g0}, v{b0}", f"v_mul_f32 v{g1}, v{g1}, v{b1}"])
                            J.append([f"v_fma_f32 v{x0}, v{x0}, v{vINV[t]}, v{vINV[t]}", f"v_fma_f32 v{x1}, v{x1}, v{vINV[t]}, v{vINV[t]}"])
                            J.append([f"v_rcp_f32 v{x0}, v{x0}"])
                            J.append([f"v_rcp_f32 v{x1}, v{x1}"])
                            J.append([f"v_mul_f32 v{g0}, v{g0}, v{x0}", f"v_mul_f32 v{g1}, v{g1}, v{x1}"])
                            J.append([f"v_cvt_pk_bf16_f32 v{r + 8 + j//2}, v{g0}, v{g1}"]) if j // 2 <= j else None
                            T = T[2:] + T[:2]
                    else:
                        X = temps[:8]
                        bc = "op_sel_hi:[1,0,0]"
                        for j in range(0, 8, 2):
                            x = X[j]
                            J.append([f"v_pk_mul_f32 v[{x}:{x+1}], v[{r+j}:{r+j+1}], v[{r+j}:{r+j+1}]"])
                        for j in range(0, 8, 2):
                            x = X[j]
                            J.append([f"v_pk_fma_f32 v[{x}:{x+1}], v[{x}:{x+1}], v[{vPK1[t]}:{vPK1[t]+1}], v[{vPK0[t]}:{vPK0[t]+1}]"])
                        for j in range(0, 8, 2):
                            x = X[j]
                            J.append([f"v_pk_mul_f32 v[{x}:{x+1}], v[{x}:{x+1}], v[{r+j}:{r+j+1}]"])
                        for j in range(8):
                            J.append([f"v_exp_f32 v{X[0]+j}, v{X[0]+j}"])
                        for j in range(0, 8, 2):
                            J.append([f"v_pk_mul_f32 v[{r+j}:{r+j+1}], v[{r+j}:{r+j+1}], v[{r+8+j}:{r+9+j}]"])
                        for j in range(0, 8, 2):
                            x = X[j]
                            J.append([f"v_pk_fma_f32 v[{x}:{x+1}], v[{x}:{x+1}], v[{vPINV[t]}:{vPINV[t]+1}], v[{vPINV[t]}:{vPINV[t]+1}]"])
                        for j in range(8):
                            J.append([f"v_rcp_f32 v{X[0]+j}, v{X[0]+j}"])
                        for j in range(0, 8, 2):
                            x = X[j]
                            J.append([f"v_pk_mul_f32 v[{r+j}:{r+j+1}], v[{r+j}:{r+j+1}], v[{x}:{x+1}]"])
                        for j in range(0, 8, 2):
                            J.append([f"v_cvt_pk_bf16_f32 v{r + 8 + j//2}, v{r+j}, v{r+j+1}"])
                    J.append([Tagged(f"buffer_store_dwordx4 v[{r+8}:{r+11}], v{vL16}, {srd}, s{s_off[t]} offen offset:{u*1024} sc1", tag)])
            return J

        def q_epi_tile(r, t, sgA, sgB, srd, tag):
            J = []
            for i in range(16):
                J.append([f"v_mul_f32 v{r+i}, v{r+i}, v{vRS[t]}"])
            for i in range(8):
                J.append([f"v_cvt_pk_bf16_f32 v{r+i}, v{r+2*i}, v{r+2*i+1}"])
            for jj in range(4):
                sg = sgA if jj < 2 else sgB
                pre = [f"s_add_u32 s{sT3}, s{sg}, {2*16384}"] if jj & 1 else []
                so = sT3 if jj & 1 else sg
                J.append(pre + [Tagged(f"buffer_store_dwordx2 v[{r+2*jj}:{r+2*jj+1}], v{vQst}, {srd}, s{so} offen offset:{t*256} sc1", tag)])
            return J

        def cost(atom):
            c = 0
            for x in atom:
                if isinstance(x, Wait) or callable(x):
                    c += 4
                    continue
                txt = x.text if isinstance(x, Tagged) else x
                mn = txt.split()[0]
                if mn.startswith("buffer_"):
                    c += 20
                elif mn in ("v_exp_f32", "v_rcp_f32", "v_sqrt_f32"):
                    c += 8
                elif mn.startswith("v_mfma"):
                    c += 24
                else:
                    c += 4
            return c

        class Q:
            def __init__(s):
                s.items = []

            def add(s, atoms):
                s.items += list(atoms)

            def fill(s, A, budget):
                while s.items and (cost(s.items[0]) <= budget):
                    at = s.items.pop(0)
                    budget -= cost(at)
                    A(at)
                return budget

            def force(s, A):
                if s.items:
                    A(s.items.pop(0))

            def flush(s, A):
                while s.items:
                    A(s.items.pop(0))

        dmaq, jobq = Q(), Q()
        slot_of = {"X0": 0, "a0": 5, "X1": 1, "a1": 6, "X2": 2, "a2": 7, "X3": 3, "X4": 4}
        pending = [("a", 3), ("X", 5), ("a", 4), ("X", 6), ("a", 5), ("a", 6)] + [("b", i) for i in range(4)] + [("c", i) for i in range(7)]
        free = []
        chunks = [("a", i) for i in range(7)] + [("b", i) for i in range(4)] + [("c", i) for i in range(7)]

        def release(n):
            if n >= 1:
                k, i = chunks[n - 1]
                free.append(slot_of[f"{k}{i}"])
                if k == "a":
                    free.append(slot_of[f"X{i}"])
            if n == 0:
                free.extend([8, 9])

        def schedule_dma(maxitems):
            cnt = 0
            while pending and free and cnt < maxitems:
                k, i = pending.pop(0)
                s = free.pop(0)
                slot_of[f"{k}{i}"] = s
                dmaq.add(dma_item(k, i, s))
                cnt += 1

        def wreads(kind, ks, buf):
            b = WF + buf * 8
            if kind in ("a", "c"):
                wk, off = win(slot_of[f"{kind}{ks//4}"] * SLOT)
                off += (ks % 4) * 2048
                return [Tagged(f"ds_read_b64_tr_b16 v[{b+4*u+2*e}:{b+4*u+2*e+1}], v{vWr[wk][u]} offset:{off+e*512}", "w") for u in range(2) for e in range(2)]
            wk, off = win(slot_of[f"b{ks//8}"] * SLOT)
            off += (ks % 8) * 2048
            return [Tagged(f"ds_read_b64_tr_b16 v[{b+2*e}:{b+2*e+1}], v{vW1r[wk]} offset:{off+e*512}", "w") for e in range(2)]

        def xreads(ks):
            wk, off = win(slot_of[f"X{ks//4}"] * SLOT)
            return [Tagged(f"ds_read_b128 {xfrag(ks, t)}, v{vXr[wk][ks % 4]} offset:{off + t*4096}", "w") for t in range(2)]

        state = {"n": 0, "buf": 0}

        def barrier(n):
            k, i = chunks[n]
            tags = [f"{k}{i}"] + ([f"X{i}"] if k == "a" else [])
            assert all(t in slot_of for t in tags), tags
            while any(any(isinstance(x, Tagged) and x.tag in tags for x in at) for at in dmaq.items):
                dmaq.force(a)
            a.wait("vm", *tags)
            a("s_barrier")
            release(n)

        hooks = {}

        def run_pass(kind, base, first_c, next_kind):
            per = 8 if kind == "b" else 4
            nu = 1 if kind == "b" else 2
            for ks in range(28):
                buf = state["buf"]
                b = WF + buf * 8
                last_in_chunk = (ks % per == per - 1) or ks == 27
                nxt = []
                mf = []
                for u in range(nu):
                    for t in range(2):
                        d, _ = acc(base, u, t)
                        c = first_c(u, t) if ks == 0 else d
                        mf.append(f"v_mfma_f32_32x32x16_bf16 {d}, v[{b+4*u}:{b+4*u+3}], {xfrag(ks, t)}, {c}")
                a.wait("lgkm", "w")
                for gi, m in enumerate(mf):
                    a(m)
                    budget = self.budget
                    if gi == 0:
                        nk, nks = (kind, ks + 1) if ks < 27 else (next_kind, 0)
                        if last_in_chunk and nk is not None:
                            state["n"] += 1
                            barrier(state["n"])
                            budget -= 8
                            schedule_dma(self.dma_rate(state["n"]))
                            if state["n"] in hooks:
                                hooks[state["n"]]()
                        if nk is not None:
                            nxt = wreads(nk, nks, 1 - buf)
                            if nk == "a":
                                nxt = nxt[:2] + xreads(nks) + nxt[2:]
                    take = nxt[: (len(nxt) + 1) // 2] if (gi == 0 and len(mf) > 1 and len(nxt) > 2) else nxt
                    if gi <= 1:
                        for x in take:
                            a(x)
                            budget -= 4
                        nxt = nxt[len(take):]
                    if gi >= (2 if len(mf) > 2 else 1) and dmaq.items:
                        at = dmaq.items.pop(0)
                        a(at)
                        budget -= cost(at)
                    if jobq.items and budget >= self.budget and cost(jobq.items[0]) > budget:
                        jobq.force(a)
                    else:
                        jobq.fill(a, budget)
                state["buf"] = 1 - buf

        for at in t0_job(): a(at)
        self.stamp()
        barrier(0)
        schedule_dma(2)
        a("s_cmp_eq_u32 s2, 0")
        a(f"s_cselect_b32 s{sT0}, 0, {OOB}")
        a(f"v_mov_b32 v{t3}, 1")
        a(f"v_lshlrev_b32 v{t4}, 10, v0")
        a(f"buffer_store_dword v{t3}, v{t4}, {SDBG}, s{sT0} offen sc1")
        a(wreads("a", 0, 0))
        a(xreads(0))
        self.stamp()

        vDbg = vT[14]
        vZero = vT[15]
        vPoll = vT[16]
        vPv = vT[18]
        assert vPv % 2 == 0
        dbg_load = f"buffer_load_dword v{vDbg}, v{vZero}, {SDBG}, 0 offen sc1"

        def h1():
            jobq.add([[f"v_mov_b32 v{vZero}, 0", Tagged(dbg_load, "dbg")]])
        hooks[1] = h1

        def h5():
            jobq.add([[poll_check("dbg", f"v_cmp_eq_u32 vcc, 0, v{vDbg}", dbg_load)], [Wait("vm", "t0s")] + flag_store(1, vDbg)])
            jobq.add([[f"v_and_b32 v{t3}, 15, v{vL}", f"v_min_u32 v{t4}, 13, v{t3}", f"v_lshlrev_b32 v{t4}, 4, v{t4}", f"v_add_u32 v{t4}, s{sC}, v{t4}"],
                      [f"s_lshl_b32 s{sT0}, s{sRB}, 4", f"v_add_u32 v{t3}, s{sT0}, v{t3}", f"v_cmp_gt_u32 vcc, 16, v{vL}", f"v_cndmask_b32 v{t3}, v{t4}, v{t3}, vcc", f"v_lshlrev_b32 v{vPoll}, 7, v{t3}"]])
        hooks[4] = h5

        poll_load = f"buffer_load_dwordx4 v[{vPv}:{vPv+3}], v{vPoll}, {SWS}, 0 offen sc1"

        def poll_cmp(val):
            return [f"v_min3_u32 v{vPv}, v{vPv}, v{vPv+1}, v{vPv+2}", f"v_min_u32 v{vPv}, v{vPv}, v{vPv+3}", f"v_cmp_gt_u32 vcc, {val}, v{vPv}"]

        CQ = ACC3
        CSG = ACC3 + 28
        CST = ACC3 + 36

        def h7():
            jobq.add([[Tagged(poll_load, "poll")]])
        hooks[7] = h7

        def h8():
            J = [[poll_check("poll", poll_cmp(1), poll_load)]]
            J.append([f"v_mul_u32_u24 v{t3}, {7*1280}, v{vHalf}", f"v_lshl_add_u32 v{t4}, v{vL31}, 4, v{t3}", f"v_lshl_add_u32 v{t5}, v{vL31}, 2, v{t3}"])
            J.append([f"s_mul_i32 s{sT0}, s{sC}, {16*1280}", f"s_mul_i32 s{sT1}, s{sCG}, 640", f"s_add_u32 s{sT0}, s{sT0}, s{sT1}", f"s_add_u32 s{sT0}, s{sT0}, {CS}"])
            J.append([f"s_add_u32 s{sT1}, s{sT0}, {3*1280}", f"s_add_u32 s{sT2}, s{sT0}, {6*1280}", f"v_and_b32 v{t3}, 0x3fff, v{vQst}", f"s_mov_b32 s{sT3}, {STATS}"])
            for t in range(2):
                J.append([Tagged(f"buffer_load_dwordx2 v[{CST+2*t}:{CST+2*t+1}], v{t3}, {SWS}, s{sT3} offen offset:{t*256} sc1", "cs")])
            for i in range(7):
                so = [sT0, sT1, sT2][i // 3]
                J.append([Tagged(f"buffer_load_dwordx4 v[{CQ+4*i}:{CQ+4*i+3}], v{t4}, {SWS}, s{so} offen offset:{(i%3)*1280} sc1", "cs")])
                J.append([Tagged(f"buffer_load_dword v{CSG+i}, v{t5}, {SWS}, s{so} offen offset:{(i%3)*1280+512} sc1", "cs")])
            jobq.add(J)
        hooks[8] = h8

        run_pass("a", ACC1, lambda u, t: "0", "b")
        self.stamp()
        run_pass("b", ACC2, lambda u, t: "0", "c")
        jobq.flush(a)
        self.stamp()

        a.wait("vm", "cs")
        for i in range(1, 7):
            for j in range(4):
                a(f"v_add_f32 v{CQ+j}, v{CQ+j}, v{CQ+4*i+j}")
            a(f"v_add_f32 v{CSG}, v{CSG}, v{CSG+i}")
        for t in range(2):
            for j in range(4):
                a(f"v_mov_b32 v{vBp[t]+j}, v{CST+2*t}")
            a(f"v_mov_b32 v{vRS[t]}, v{CST+2*t+1}")
        a(f"s_mov_b32 s{sT0}, 0x07060302")

        def split(src, dst, tmp):
            a(f"v_and_b32 v{tmp}, 0xffff0000, v{src}")
            a(f"v_sub_f32 v{tmp}, v{src}, v{tmp}")
            a(f"v_perm_b32 v{dst}, v{tmp}, v{src}, s{sT0}")
            a(f"v_and_b32 v{dst+1}, 0xffff0000, v{tmp}")
            a(f"v_sub_f32 v{tmp}, v{tmp}, v{dst+1}")
            a(f"v_lshrrev_b32 v{dst+1}, 16, v{tmp}")
            a(f"v_mov_b32 v{dst+2}, 0")
            a(f"v_mov_b32 v{dst+3}, 0")
        AP = [CQ + 4, CQ + 8, vAp3[0], vAp3[1], CQ + 12]
        srcs = [CQ, CQ + 1, CQ + 2, CQ + 3, CSG]
        for i in (4, 0, 1, 2, 3):
            split(srcs[i], AP[i], CQ + 16)
        for t in range(2):
            d, _ = acc(ACC2, 0, t)
            a(f"v_mfma_f32_32x32x16_bf16 {d}, v[{AP[4]}:{AP[4]+3}], v[{vBp[t]}:{vBp[t]+3}], {d}")
        for u in range(2):
            for t in range(2):
                d, _ = acc(ACC1, u, t)
                a(f"v_mfma_f32_32x32x16_bf16 {d}, v[{AP[u]}:{AP[u]+3}], v[{vBp[t]}:{vBp[t]+3}], {d}")
        C0 = -2.0 * 0.7978845608028654 * 1.4426950408889634
        C1 = C0 * 0.044715
        for t in range(2):
            a(f"v_mul_f32 v{vINV[t]}, v{vRS[t]}, v{vRS[t]}")
            a(f"v_mul_f32 v{vK0[t]}, {f32(C0)}, v{vRS[t]}")
            a(f"v_mul_f32 v{vK1[t]}, {f32(C1)}, v{vRS[t]}")
            a(f"v_mul_f32 v{vK1[t]}, v{vK1[t]}, v{vINV[t]}")
            a(f"v_rcp_f32 v{vINV[t]}, v{vINV[t]}")
        a(f"s_lshl_b32 s{sT0}, s{sL2}, 4\ns_lshl_b32 s{sT1}, s{sCG}, 2\ns_add_u32 s{sT0}, s{sT0}, s{sT1}\ns_lshl_b32 s{sT0}, s{sT0}, 14\ns_add_u32 s{sT0}, s{sT0}, {QKV}")
        a(f"s_add_u32 s{sT1}, s{sT0}, {8*16384}")
        for t in range(2):
            _, r = acc(ACC2, 0, t)
            for at in q_epi_tile(r, t, sT0, sT1, SQ2, "q"): a(at)
        lq = self.label("notC")
        a(f"s_cmp_eq_u32 s{sTYPEC}, 0")
        a(f"s_cbranch_scc1 {lq}")
        a.maybe_begin()
        for u in range(2):
            a(f"s_lshl_b32 s{sT0}, s{sL1}, 4\ns_lshl_b32 s{sT1}, s{sCG}, 3\ns_add_u32 s{sT0}, s{sT0}, s{sT1}\ns_add_u32 s{sT0}, s{sT0}, {4*u}\ns_lshl_b32 s{sT0}, s{sT0}, 14\ns_add_u32 s{sT0}, s{sT0}, {QKV}")
            a(f"s_add_u32 s{sT1}, s{sT0}, {16*16384}")
            for t in range(2):
                _, r = acc(ACC1, u, t)
                for at in q_epi_tile(r, t, sT0, sT1, SWS, "q"): a(at)
        a.maybe_end()
        a(f"{lq}:")
        a("s_nop 1")
        for u in range(2):
            for t in range(2):
                d, _ = acc(ACC3, u, t)
                a(f"v_mfma_f32_32x32x16_bf16 {d}, v[{vAp3[u]}:{vAp3[u]+3}], v[{vBp[t]}:{vBp[t]+3}], 0")
        def hoffs(spair):
            a(f"s_lshl_b32 s{sT0}, s{sRB}, 2\ns_lshl_b32 s{sT1}, s{sRG}, 1\ns_add_u32 s{sT0}, s{sT0}, s{sT1}\ns_mul_i32 s{sT0}, s{sT0}, 112")
            a(f"s_lshl_b32 s{sT1}, s{spair}, 2\ns_add_u32 s{sT0}, s{sT0}, s{sT1}\ns_lshl_b32 s{sT1}, s{sCG}, 1\ns_add_u32 s{sT0}, s{sT0}, s{sT1}")
            a(f"s_lshl_b32 s{sT0}, s{sT0}, 10\ns_add_u32 s{sH0}, s{sT0}, {HBUF}\ns_add_u32 s{sH1o}, s{sH0}, {112*1024}")
        hoffs(sPAIR1)
        self.stamp()
        jobq.add(f_epi(ACC1, SH1, [sH0, sH1o], [ACC2 + i for i in range(8)], False, "h1"))

        def h14():
            jobq.items.insert(0, [Wait("vm", "q")] + flag_store(2, vDbg))
        hooks[13] = h14
        run_pass("c", ACC3, lambda u, t: acc(ACC3, u, t)[0], None)
        jobq.flush(a)
        self.stamp()
        vPK0 = [ACC2 + 8, ACC2 + 10]; vPK1 = [ACC2 + 12, ACC2 + 14]; vPINV = [ACC2 + 16, ACC2 + 18]
        for t in range(2):
            for (dst, src) in ((vPK0, vK0), (vPK1, vK1), (vPINV, vINV)):
                a(f"v_mov_b32 v{dst[t]}, v{src[t]}\nv_mov_b32 v{dst[t]+1}, v{src[t]}")
        hoffs(sPAIR3)
        for at in f_epi(ACC3, SWS, [sH0, sH1o], [ACC2 + i for i in range(8)], True, "h3"): a(at)
        self.stamp()
        a("s_waitcnt vmcnt(0)")
        a(flag_store(4, vDbg))

        if self.ts:
            a(f"s_lshl_b32 s{sT0}, s2, 2\ns_add_u32 s{sT0}, s{sT0}, s{sW}\ns_lshl_b32 s{sT0}, s{sT0}, 8\ns_add_u32 s{sT0}, s{sT0}, {TSB}")
            a(f"v_lshlrev_b32 v{t3}, 2, v{vL}")
            a(f"buffer_store_dword v{self.vTS}, v{t3}, {SWS}, s{sT0} offen")
        a("L_end:")
        a("s_endpgm")
        a("L_codeend:")

    def dma_rate(self, n):
        return 2

    def text(self):
        self.build()
        nn = self.a.fix_hazards()
        fx = self.a.fix_alignment()
        sys.stderr.write(f"hazard nops {nn}, align fixed/left {fx}, code bytes {self.a.nbytes()}\n")
        head = open(os.path.join(os.path.dirname(os.path.abspath(__file__)), "..", "cdna_kernels",
                                 "parallel_sum__sliding_block__geglu_ffn__prompt.s.ref")).read().split("; Override")[0]
        s = head
        s += "; @launch grid=(256,1,1) block=(256,1,1) lds=163840\n"
        s += '.amdgcn_target "amdgcn-amd-amdhsa--gfx950"\n.text\n'
        s += f".globl {KNAME}\n.type {KNAME},@function\n"
        s += self.a.text()
        s += f""".section .rodata,"a"
.p2align 6
.amdhsa_kernel {KNAME}
  .amdhsa_next_free_vgpr 512
  .amdhsa_next_free_sgpr 102
  .amdhsa_accum_offset 256
  .amdhsa_group_segment_fixed_size 0
  .amdhsa_kernarg_size 80
  .amdhsa_user_sgpr_count 2
  .amdhsa_user_sgpr_kernarg_segment_ptr 1
  .amdhsa_system_sgpr_workgroup_id_x 1
.end_amdhsa_kernel
"""
        return s


if __name__ == "__main__":
    import argparse
    ap = argparse.ArgumentParser()
    ap.add_argument("-o", default="k.s")
    ap.add_argument("--ts", action="store_true")
    args = ap.parse_args()
    open(args.o, "w").write(G(ts=args.ts).text())
```

```python
import sys
from asmlib import Wait, Tagged
from gen import f32, QKV, OBUF, HBUF, OOB, SLOT, Q, cost, MB


class NS:
    def __init__(self, d):
        self.__dict__.update(d)


def emit(self, E):
    e = NS(E)
    a = self.a
    O = self.o
    sW, sRB, sC = e.sW, e.sRB, e.sC
    sT0, sT1, sT2, sT3, sSO, sWB = e.sT0, e.sT1, e.sT2, e.sT3, e.sSO, e.sWB
    vL, vL16, vHalf, vL31, vDbg = e.vL, e.vL16, e.vHalf, e.vL31, e.vDbg
    t0, t1, t2, t3, t4, t5 = e.t0, e.t1, e.t2, e.t3, e.t4, e.t5
    SWS, SX, SOUT = e.SWS, e.SX, e.SOUT
    KBASE, VBASE, GSK, GSV, QF = e.KBASE, e.VBASE, e.GSK, e.GSV, e.QF
    sTB, sJ = e.sTB, e.sJ
    vPoll, vPv = e.vPoll, e.vPv
    win = e.win
    slot_of = e.slot_of

    S0 = 112
    KF = 80
    OA = 18
    vK, vV = 34, 35
    NEG = -1.0e30
    B4 = 48
    a(f"v_min_u32 v{t3}, 191, v0")
    a(f"s_lshl_b32 s{sT0}, s{sRB}, 6")
    a(f"v_add_u32 v{t4}, s{sT0}, v{t3}")
    a(f"v_mov_b32 v{t5}, 0xf14a")
    a(f"v_cmp_gt_u32 vcc, 128, v{t4}")
    a(f"v_mov_b32 v{B4+1}, 0")
    a(f"v_mov_b32 v{B4+3}, 0")
    a(f"v_cndmask_b32 v{B4}, 0, v{t5}, vcc")
    a(f"v_cndmask_b32 v{B4+2}, 0, v{t5}, vcc")
    a(f"v_lshlrev_b32 v{t3}, 4, v{t3}")
    a(f"v_add_u32 v{t3}, {KBASE + 7*GSK}, v{t3}")
    a(Tagged(f"ds_write_b128 v{t3}, v[{B4}:{B4+3}]", "kvw"))
    a(f"v_min_u32 v{t4}, 147, v0")
    a(f"v_lshlrev_b32 v{t4}, 4, v{t4}")
    a(f"v_add_u32 v{t4}, {VBASE + 7*GSV}, v{t4}")
    ON = 44
    for i in range(4):
        a(f"v_mov_b32 v{ON+i}, 0x3f803f80")
    a(Tagged(f"ds_write_b128 v{t4}, v[{ON}:{ON+3}]", "kvw"))
    vFlag, vFo, vOOB = e.vFlag, 40, e.vOOB
    a(f"s_lshr_b32 s{sT0}, s{sC}, 2\ns_lshl_b32 s{sT0}, s{sT0}, 7\ns_and_b32 s{sT1}, s{sC}, 3\ns_lshl1_add_u32 s{sT0}, s{sT1}, s{sT0}")
    a(f"s_lshl_b32 s{sT1}, s{sRB}, 15\ns_add_u32 s{sT0}, s{sT0}, s{sT1}\ns_add_u32 s{sT0}, s{sT0}, {MB + 10*128}")
    a(f"s_lshl_b32 s{sT1}, s{e.sRG}, 14\ns_add_u32 s{sT1}, s{sT1}, s{e.sCG}\ns_add_u32 s{sT1}, s{sT1}, s{sT0}")
    a(f"s_lshl_b32 s{sT2}, s{e.sCG}, 14\ns_add_u32 s{sT2}, s{sT2}, s{e.sRG}\ns_add_u32 s{sT2}, s{sT2}, s{sT0}\ns_add_u32 s{sT2}, s{sT2}, 8")
    a(f"v_cmp_gt_u32 vcc, 7, v{vL}")
    a(f"v_lshl_add_u32 v{t3}, v{vL}, 11, s{sT1}")
    a(f"v_lshl_add_u32 v{t4}, v{vL}, 11, s{sT2}")
    a(f"v_cndmask_b32 v{vFlag}, v{vOOB}, v{t3}, vcc")
    a(f"v_cndmask_b32 v{vFo}, v{vOOB}, v{t4}, vcc")
    a(f"v_mov_b32 v{vDbg}, 3")
    a.wait("vm", "h1")
    a(e.push(vFlag))
    a(f"s_lshl_b32 s{sT0}, s{sW}, 8")
    a(f"v_mul_u32_u24 v{t3}, {2*GSK}, v{vHalf}")
    a(f"v_lshl_add_u32 v{t3}, v{vL31}, 3, v{t3}")
    a(f"v_add_u32 v{t3}, s{sT0}, v{t3}")
    a(f"v_add_u32 v{vK}, {KBASE}, v{t3}")
    a(f"v_bfe_u32 v{t3}, v{vL}, 4, 1")
    a(f"v_and_b32 v{t4}, 3, v{vL}")
    a(f"v_lshl_add_u32 v{t3}, v{t3}, 2, v{t4}")
    a(f"v_mul_u32_u24 v{t4}, {GSV}, v{t3}")
    a(f"v_mov_b32 v{t5}, s{sT0}")
    a(f"v_cmp_ne_u32 vcc, 7, v{t3}")
    a(f"v_bfe_u32 v{t3}, v{vL}, 2, 2")
    a(f"v_lshl_add_u32 v{t3}, v{vHalf}, 2, v{t3}")
    a(f"v_cndmask_b32 v{t5}, 0, v{t5}, vcc")
    a(f"v_lshl_add_u32 v{t4}, v{t3}, 3, v{t4}")
    a(f"v_add_u32 v{vV}, v{t4}, v{t5}")
    a(f"v_add_u32 v{vV}, {VBASE}, v{vV}")
    vR = [[36, 37], [38, 14]]
    vRn = [15, 16]
    a(f"v_lshlrev_b32 v{t3}, 7, v{t3}")
    a(f"v_and_b32 v{t4}, 3, v{vL}")
    a(f"v_lshl_add_u32 v{t3}, v{t4}, 3, v{t3}")
    a(f"v_bfe_u32 v{t4}, v{vL}, 3, 1")
    a(f"v_bfe_u32 v{t5}, v{vL}, 4, 1")
    a(f"v_lshl_or_b32 v{t4}, v{t4}, 1, v{t5}")
    for ct in range(2):
        a(f"v_xor_b32 v{t5}, {2*ct}, v{t4}")
        a(f"v_lshl_add_u32 v{vRn[ct]}, v{t5}, 5, v{t3}")
        a(f"v_add_u32 v{vR[0][ct]}, s{sWB}, v{vRn[ct]}")
        a(f"v_add_u32 v{vR[1][ct]}, 0x10000, v{vR[0][ct]}")
    a(f"v_lshlrev_b32 v{t3}, 2, v{vHalf}")
    a(f"v_sub_u32 v{t3}, v{vL31}, v{t3}")
    a(f"v_mov_b32 v{t4}, {f32(NEG)}")
    for r0 in range(0, 16, 4):
        for r in range(r0, r0 + 4):
            kk = (r & 3) + 8 * (r >> 2)
            a(f"v_cmp_gt_i32 s[{72+2*(r&3)}:{73+2*(r&3)}], {kk}, v{t3}")
        for r in range(r0, r0 + 4):
            sp = f"s[{72+2*(r&3)}:{73+2*(r&3)}]"
            a(f"v_cndmask_b32 v{S0+r}, v{t4}, 0, {sp}")
            a(f"v_cndmask_b32 v{S0+128+r}, 0, v{t4}, {sp}")
    a(f"v_cmp_eq_u32 vcc, 1, v{vHalf}")
    a(f"v_mov_b32 v{t5}, 0x3f80")
    a.wait("vm", "kv")
    a(f"v_cndmask_b32 v{QF+6}, v{QF+6}, v{t5}, vcc")
    a(f"v_cndmask_b32 v{QF+7}, v{QF+7}, v{B4+1}, vcc")
    a.wait("lgkm", "kvw")
    a("s_barrier")
    self.stamp("asetup")
    e.free.append(slot_of["c5"])
    e.free.append(slot_of["c6"])
    e.schedule_dma(9)
    assert not e.pending
    vq = e.dmaq

    def kreads(kt):
        b = KF + (kt % 3) * 8
        return [Tagged(f"ds_read_b64 v[{b+4*s+2*x}:{b+4*s+2*x+1}], v{vK} offset:{(4*s+x)*GSK + kt*256}", f"k{kt}") for s in range(2) for x in range(2)]

    def vreads(kt):
        b = KF + (kt % 3) * 8
        return [Tagged(f"ds_read_b64_tr_b16 v[{b+4*s+2*x}:{b+4*s+2*x+1}], v{vV} offset:{kt*256 + s*128 + x*64}", f"v{kt}") for s in range(2) for x in range(2)]

    def w2reads(ks, dst, tag):
        wk, off = win(slot_of[f"d{ks//2}"] * SLOT)
        off += (ks % 2) * 2048
        k, b = dst
        return [Tagged(f"ds_read_b64_tr_b16 {k}[{b+4*ct+2*x}:{b+4*ct+2*x+1}], v{vR[wk][ct]} offset:{off + x*1024}", tag) for ct in range(2) for x in range(2)]

    M0, M1 = 44, 45

    def maxops(kt):
        r = S0 + kt * 16
        o = []
        for i in range(0, 16, 4):
            if kt == 0 and i == 0:
                o.append(f"v_max_f32 v{M0}, v{r}, v{r+1}")
                o.append(f"v_max_f32 v{M1}, v{r+2}, v{r+3}")
            else:
                o.append(f"v_max3_f32 v{M0}, v{M0}, v{r+i}, v{r+i+1}")
                o.append(f"v_max3_f32 v{M1}, v{M1}, v{r+i+2}, v{r+i+3}")
        return o

    a(kreads(0)); a(kreads(1))
    for kt in range(9):
        b = KF + (kt % 3) * 8
        d = f"v[{S0+kt*16}:{S0+kt*16+15}]"
        c = d if kt in (0, 8) else "0"
        mx = maxops(kt - 2) if kt >= 2 else []
        a.wait("lgkm", f"k{kt}")
        a(f"v_mfma_f32_32x32x16_bf16 {d}, v[{b}:{b+3}], v[{QF}:{QF+3}], {c}")
        if kt + 2 < 9:
            a(kreads(kt + 2))
        a(mx[:2])
        a(f"v_mfma_f32_32x32x16_bf16 {d}, v[{b+4}:{b+7}], v[{QF+4}:{QF+7}], {d}")
        a(mx[2:])
        if kt < 2:
            vq.force(a)
    a(vreads(0)); a(vreads(1))
    a(maxops(7))
    vq.force(a)
    a(maxops(8))
    CSC = (28 ** -0.5) * 1.4426950408889634
    PC, PM = 46, 48
    a(f"v_max_f32 v{M0}, v{M0}, v{M1}")
    a(f"v_mov_b32 v{M1}, v{M0}")
    a(f"v_mov_b32 v{PC}, {f32(CSC)}")
    a(f"v_mov_b32 v{PC+1}, {f32(CSC)}")
    a(f"v_permlane32_swap_b32 v{M0}, v{M1}")
    a(f"v_max_f32 v{M0}, v{M0}, v{M1}")
    a(f"v_mul_f32 v{PM}, {f32(-CSC)}, v{M0}")
    a(f"v_mul_f32 v{PM+1}, {f32(-CSC)}, v{M0}")
    for i in range(0, 144, 2):
        a(f"v_pk_fma_f32 v[{S0+i}:{S0+i+1}], v[{S0+i}:{S0+i+1}], v[{PC}:{PC+1}], v[{PM}:{PM+1}]")
        if i % 16 == 14:
            vq.force(a)
    vq.flush(a)
    self.stamp("aS", "q")
    sHb6, sHb24 = e.sH0, e.sH1o
    a(f"s_mul_i32 s{sT0}, s{sTB}, {2*112*1024}\ns_add_u32 s{sT0}, s{sT0}, {HBUF}")
    a(f"s_mul_i32 s{sHb6}, s{sW}, {6*4096}\ns_add_u32 s{sHb6}, s{sHb6}, s{sT0}")
    a(f"s_add_u32 s{sHb24}, s{sWB}, s{sT0}\ns_add_u32 s{sHb24}, s{sHb24}, {24*4096}")
    a(f"s_lshl3_add_u32 s{sT0}, s{sTB}, s{sJ}\ns_lshl_b32 s{sT0}, s{sT0}, 11\ns_lshl_b32 s{sT3}, s{sW}, 7\ns_add_u32 s{sT0}, s{sT0}, s{sT3}\ns_add_u32 s{sT0}, s{sT0}, {MB + 10*128}")
    a(f"v_mov_b32 v{vPoll}, s{sT0}")
    HR, NR = 112, 18

    def hreg(ks, rt):
        return HR + ((ks % NR) * 2 + rt) * 4

    def hload(ks, rt):
        n, i = ks // 4, ks % 4
        sreg = sT1 if rt == 0 else sT2
        pre = []
        if i == 0:
            if n < 6:
                pre = [f"s_add_u32 s{sreg}, s{sHb6}, {[0,2,4,1,3,5][n]*4096 + rt*112*1024}"]
            else:
                pre = [f"s_add_u32 s{sreg}, s{sHb24}, {rt*112*1024}"]
        r = hreg(ks, rt)
        return pre + [Tagged(f"buffer_load_dwordx4 a[{r}:{r+3}], v{vL16}, {SWS}, s{sreg} offen offset:{i*1024} sc1", f"h{ks}")]

    od = f"v[{OA}:{OA+15}]"
    pend = []
    NMOVE = O.get("nmove", 7)
    for kt in range(9):
        r = S0 + kt * 16
        b = KF + (kt % 3) * 8
        for hgrp in range(2):
            for i in range(8):
                a(f"v_exp_f32 v{r+hgrp*8+i}, v{r+hgrp*8+i}")
                if i == 1 and pend:
                    a(pend.pop(0))
                if i in (3, 6):
                    vq.force(a)
            for i in range(4):
                a(f"v_cvt_pk_bf16_f32 v{r+hgrp*4+i}, v{r+hgrp*8+2*i}, v{r+hgrp*8+2*i+1}")
            c = "0" if (kt == 0 and hgrp == 0) else od
            pend.append([Wait("lgkm", f"v{kt}"), f"v_mfma_f32_32x32x16_bf16 {od}, v[{b+4*hgrp}:{b+4*hgrp+3}], v[{r+hgrp*4}:{r+hgrp*4+3}], {c}"])
        if kt + 2 < 9:
            a(vreads(kt + 2))
        if kt < NMOVE:
            a.wait("vm", f"d{kt}")
            for ks in (2 * kt, 2 * kt + 1):
                a(w2reads(ks, ("a", ks * 8), f"mv{kt}"))
            slot_of[f"d{kt+7}"] = slot_of[f"d{kt}"]
            it = e.dma_item("d", kt + 7, slot_of[f"d{kt}"])
            it[0] = [Wait("lgkm", f"mv{kt}")] + it[0]
            vq.add(it)
        if kt == O.get("kt_f4", 4):
            a.wait("vm", "h3")
            a(e.push(vFlag, vDbg))
        self.stamp(f"P{kt}", "a")
        if kt == O.get("kt_p3", 6):
            vq.add([[Tagged(e.poll_load, "p3")]])
    vq.flush(a)
    while pend:
        a(pend.pop(0))
    self.stamp("aP", "q")
    LEAD = O.get("hlead", 6)
    lno = self.label("noh")
    a(f"s_cmp_ge_u32 s{sJ}, 7")
    a(f"s_cbranch_scc1 {lno}")
    a(e.poll_check("p3", e.poll_cmp(e.M1), e.poll_load))
    a(f"{lno}:")
    self.stamp("p3", "q")
    hq = Q()
    for ks in range(28):
        if ks == 12:
            hq.add([[e.poll_check("p4", e.poll_cmp(e.M2), e.poll_load)] + hload(ks, 0), hload(ks, 1)])
        else:
            hq.add([hload(ks, 0), hload(ks, 1)])
        if ks == 2:
            hq.add([[Tagged(e.poll_load, "p4")]])
    N = []
    N += [f"v_mov_b32 v{M0}, v{OA+12}", f"v_mov_b32 v{M1}, v{OA+12}"]
    N += [f"s_mul_i32 s{sT0}, s{sC}, {7*16384}", f"s_lshl2_add_u32 s{sT3}, s{sRB}, s{sW}", f"s_lshl_b32 s{sT3}, s{sT3}, 8", f"s_add_u32 s{sT0}, s{sT0}, s{sT3}"]
    N += [f"v_permlane32_swap_b32 v{M0}, v{M1}", f"v_rcp_f32 v{M1}, v{M1}"]
    N += [f"v_lshlrev_b32 v{t3}, 3, v{vL31}", f"v_lshl_add_u32 v{t4}, v{vHalf}, 14, v{t3}", f"v_mul_u32_u24 v{t5}, {OOB & 0xffffff}, v{vHalf}", f"v_lshl_add_u32 v{t5}, v{t5}, 6, v{t3}"]
    N += [f"v_mul_f32 v{OA+i}, v{OA+i}, v{M1}" for i in range(16)]
    N += [f"v_cvt_pk_bf16_f32 v{OA+i}, v{OA+2*i}, v{OA+2*i+1}" for i in range(8)]
    for i in range(2 * LEAD + 1):
        hq.force(a)
    a(N)
    for jj in range(4):
        a(f"s_add_u32 s{sT3}, s{sT0}, {OBUF + 2*jj*16384}")
        a(Tagged(f"buffer_store_dwordx2 v[{OA+2*jj}:{OA+2*jj+1}], v{t5 if jj == 3 else t4}, {SWS}, s{sT3} offen sc1", "o"))
    self.stamp("attn")

    lskip = self.label("g2")
    a(f"s_cmp_lt_u32 s{sJ}, 7")
    a(f"s_cbranch_scc1 {lskip}")
    a.maybe_begin()
    a("s_waitcnt vmcnt(0)")
    a(e.push(vFo))
    a.maybe_end()
    a("s_branch L_fin")
    a(f"{lskip}:")
    XR = 2
    vO = 17
    vOd = [10, 11, 12, 13]
    ACC = 128
    WF = 80
    FIN = 192
    jq = Q()
    jq.add([[f"s_lshl1_add_u32 s{sT0}, s{sTB}, s{e.sRG}", f"s_mul_i32 s{sT0}, s{sT0}, {32*896}", f"s_lshl1_add_u32 s{sT3}, s{sJ}, s{e.sCG}", f"s_lshl_b32 s{sT3}, s{sT3}, 6"],
            [f"s_add_u32 s{sT0}, s{sT0}, s{sT3}", f"v_mul_u32_u24 v{t3}, 896, v{vL31}", f"v_add_u32 v{t3}, s{sT0}, v{t3}", f"v_lshl_add_u32 v{vO}, v{vHalf}, 3, v{t3}"],
            [f"v_lshlrev_b32 v{t3}, 4, v{vL31}", f"v_lshl_add_u32 v{vOd[0]}, v{vHalf}, 14, v{t3}"],
            [f"v_add_u32 v{vOd[o]}, {o*(32768-1024)}, v{vOd[0]}" for o in range(1, 4)]])
    vPW = [50, 51]
    vOr = [54, 55]
    vWo = [56, 57, 58]
    vPR = [[44, 45], [46, 47], [48, 49]]
    jq.add([[f"v_add_u32 v{vPW[0]}, s{sWB}, v{vL16}", f"v_add_u32 v{vPW[1]}, 0x10000, v{vPW[0]}"],
            [f"s_lshl_b32 s{sT0}, s{e.sRG}, 8", f"v_lshlrev_b32 v{vOr[1]}, 3, v{vL31}", f"v_lshl_add_u32 v{vOr[1]}, v{vHalf}, 9, v{vOr[1]}", f"v_add_u32 v{vOr[0]}, s{sT0}, v{vOr[1]}"],
            [f"v_add_u32 v{vOr[1]}, 0x10000, v{vOr[0]}", f"s_cmp_eq_u32 s{e.sCG}, 0", "s_cselect_b64 vcc, -1, 0", f"v_cndmask_b32 v{vWo[0]}, v{vRn[1]}, v{vRn[0]}, vcc"],
            [f"v_add_u32 v{vWo[1]}, 0x10000, v{vWo[0]}", f"v_add_u32 v{vWo[2]}, 0x20000, v{vWo[0]}"]])
    for k in range(3):
        jq.add([[f"s_add_u32 s{sT0}, s{sW}, {3-k}", f"s_and_b32 s{sT0}, s{sT0}, 3", f"s_lshl_b32 s{sT0}, s{sT0}, 12", f"v_add_u32 v{vPR[k][0]}, s{sT0}, v{vL16}",
                 f"v_add_u32 v{vPR[k][1]}, 0x10000, v{vPR[k][0]}"]])
    KA = 2 * NMOVE
    SL = None
    if KA == 0:
        a.wait("vm", "d0")
        a(w2reads(0, ("v", WF), "w2"))
    for ks in range(28):
        buf = ks % 2
        b = WF + buf * 8
        if ks >= KA:
            a.wait("lgkm", "w2")
        while hq.has([f"h{ks}"]):
            hq.force(a)
        a.wait("vm", f"h{ks}")
        if ks >= KA and ks % 2 == 1 and ks // 2 + 7 < 14 and f"d{ks//2+7}" not in slot_of:
            it = ks // 2 + 7
            slot_of[f"d{it}"] = slot_of[f"d{it-7}"]
            hq.items[0:0] = e.dma_item("d", it, slot_of[f"d{it}"])
        gi = 0
        for ct in range(2):
            for rt in range(2):
                r = ACC + (ct * 2 + rt) * 16
                d = f"v[{r}:{r+15}]"
                hr = hreg(ks, rt)
                wop = f"a[{ks*8+4*ct}:{ks*8+4*ct+3}]" if ks < KA else f"v[{b+4*ct}:{b+4*ct+3}]"
                a(f"v_mfma_f32_32x32x16_bf16 {d}, {wop}, a[{hr}:{hr+3}], {'0' if ks == 0 else d}")
                if gi == 0:
                    if ks + 1 >= KA and ks < 27:
                        tg = f"d{(ks+1)//2}"
                        while hq.has([tg]):
                            hq.force(a)
                        a.wait("vm", tg)
                        a(w2reads(ks + 1, ("v", WF + (1 - buf) * 8), "w2"))
                    else:
                        jq.fill(a, 24)
                elif gi in (1, 2):
                    hq.force(a)
                else:
                    jq.fill(a, 20)
                gi += 1
        if ks % 2 == 1:
            self.stamp(f"g{ks}", "g")
        if ks == 2:
            a("s_barrier")
            for i in range(3):
                slot_of[f"e{i}"] = 7 + i
                hq.add(e.dma_item("e", i, 7 + i))
        if ks == O.get("ks_f5", 8):
            jq.items.insert(0, [Wait("vm", "o")] + e.push(vFo))
        if ks == 12:
            jq.add([[Tagged(f"buffer_load_dwordx2 v[{XR+2*jj}:{XR+2*jj+1}], v{vO}, {SX}, 0 offen offset:{jj*16}", "xr")] for jj in range(4)])
        if ks == O.get("ks_p5", 22):
            jq.add([[Tagged(e.poll_load, "p5")]])
    hq.flush(a)
    jq.flush(a)
    self.stamp("g2h")
    SL = [slot_of[f"d{7+i}"] for i in range(7)]
    a(f"s_add_u32 m0, s{sWB}, {SL[3]*SLOT + 2048}")
    a(f"s_mul_i32 s{sSO}, s{sW}, {16*896}\ns_add_u32 s{sSO}, s{sSO}, {384*896}")
    for o in range(2):
        a(Tagged(f"buffer_load_dwordx4 v{e.vW2d[o]}, {e.SWO}, s{sSO} offen offset:{o*1024} lds", "e3"))
    lj = self.label("pj")
    lw = [self.label(f"pw{w}") for w in range(4)]
    for w in range(1, 4):
        a(f"s_cmp_eq_u32 s{sW}, {w}")
        a(f"s_cbranch_scc1 {lw[w]}")
    for w in range(4):
        a(f"{lw[w]}:")
        a("s_nop 5")
        if w < 3: a.maybe_begin()
        for k in range(3):
            d = (w + 1 + k) & 3
            wk, off = win(SL[4 + k] * SLOT)
            for x in range(4):
                r = ACC + d * 16 + x * 4
                a(Tagged(f"ds_write_b128 v{vPW[wk]}, v[{r}:{r+3}] offset:{off + x*1024}", "pw"))
        for x in range(0, 16, 2):
            a(f"v_pk_mov_b32 v[{FIN+x}:{FIN+x+1}], v[{ACC + w*16 + x}:{ACC + w*16 + x + 1}], v[{ACC + w*16 + x}:{ACC + w*16 + x + 1}] op_sel:[0,1]")
        if w < 3:
            a.maybe_end()
            a(f"s_branch {lj}")
    a(f"{lj}:")
    a(e.poll_check("p5", e.poll_cmp(e.M1, 1), e.poll_load))
    self.stamp("p5", "q")
    a(f"s_mul_i32 s{sT0}, s{sW}, {28*16384}\ns_lshl_b32 s{sT1}, s{sTB}, 9\ns_add_u32 s{sT0}, s{sT0}, s{sT1}")
    for g4 in range(4):
        a(f"s_add_u32 m0, s{sWB}, {SL[g4]*SLOT}")
        a(f"s_add_u32 s{sSO}, s{sT0}, {OBUF + g4*8*16384}")
        for o in range(4 if g4 < 3 else 2):
            a(Tagged(f"buffer_load_dwordx4 v{vOd[o]}, {SWS}, s{sSO} offen offset:{o*1024} sc1 lds", "od"))
    a.wait("vm", "e3")
    a("s_waitcnt lgkmcnt(0)")
    a("s_barrier")
    self.stamp("barA", "q")
    PRD = 128
    for k in range(3):
        wk, off = win(SL[4 + k] * SLOT)
        for x in range(4):
            r = PRD + k * 16 + x * 4
            a(Tagged(f"ds_read_b128 v[{r}:{r+3}], v{vPR[k][wk]} offset:{off + x*1024}", f"pr{k}"))
    J = []
    for i in range(8):
        J.append(f"v_lshlrev_b32 v{PRD+48+2*i}, 16, v{XR+i}")
        J.append(f"v_and_b32 v{PRD+49+2*i}, 0xffff0000, v{XR+i}")
    for x in range(0, 16, 2):
        J.append(f"v_pk_add_f32 v[{FIN+x}:{FIN+x+1}], v[{FIN+x}:{FIN+x+1}], v[{PRD+48+x}:{PRD+49+x}]")
    for k in range(3):
        J.append(Wait("lgkm", f"pr{k}"))
        for x in range(0, 16, 2):
            J.append(f"v_pk_add_f32 v[{FIN+x}:{FIN+x+1}], v[{FIN+x}:{FIN+x+1}], v[{PRD+16*k+x}:{PRD+16*k+x+1}]")
    a(J)
    for s in range(28):
        if s < 24:
            wk, off = win((7 + s // 8) * SLOT + (s % 8) * 2048)
        else:
            wk, off = win(SL[3] * SLOT + (s - 24) * 4096 + 2048)
        a([Tagged(f"ds_read_b64_tr_b16 a[{4*s+2*x}:{4*s+2*x+1}], v{vWo[wk]} offset:{off + x*1024}", "wo") for x in range(2)])
    a(f"v_lshl_add_u32 v{vO}, v{vHalf}, 3, v{vO}")
    a.wait("vm", "od")
    a("s_barrier")
    self.stamp("barB")

    NB = 8

    def oreads(s):
        b = WF + (s % NB) * 4
        ow, gi = s // 7, (s % 7) * 4
        wk, off = win(SL[gi >> 3] * SLOT + ow * 4096 + (gi & 7) * 512)
        return [Tagged(f"ds_read_b64 v[{b+2*x}:{b+1+2*x}], v{vOr[wk]} offset:{off + x*1024}", f"o{s}") for x in range(2)]
    for s in range(5):
        a(oreads(s))
    fd = f"v[{FIN}:{FIN+15}]"
    for s in range(28):
        b = WF + (s % NB) * 4
        a.wait("lgkm", f"o{s}")
        a(f"v_mfma_f32_32x32x16_bf16 {fd}, a[{4*s}:{4*s+3}], v[{b}:{b+3}], {fd}")
        if s + 5 < 28:
            a(oreads(s + 5))
    for i in range(8):
        a(f"v_cvt_pk_bf16_f32 v{FIN+i}, v{FIN+2*i}, v{FIN+2*i+1}")
    for pq in range(2):
        r = FIN + pq * 4
        a(f"v_permlane32_swap_b32 v{r}, v{r+2}")
        a(f"v_permlane32_swap_b32 v{r+1}, v{r+3}")
        a(f"buffer_store_dwordx4 v[{r}:{r+3}], v{vO}, {SOUT}, 0 offen offset:{pq*32}")
    a("L_fin:")
    self.stamp("opart")
```

```python
import sys, os, struct
sys.path.insert(0, os.path.dirname(os.path.abspath(__file__)))
from asmlib import Asm, Wait, Tagged, Ins

KNAME = "parallel_sum__sliding_block__geglu_ffn__prompt_kernel"

MB = 0xF80000
STATS = 0x8000
CS = 0x10000
QKV = 0x80000
OBUF = 0x600000
HBUF = 0x800000
TSB = 0x1000000
WS_BYTES = 0x1100000
OOB = 0x3ffffff0
SLOT = 16384


def f32(x):
    return "0x%08x" % struct.unpack("<I", struct.pack("<f", x))[0]


def cost(atom):
    c = 0
    for x in atom:
        if isinstance(x, Wait) or callable(x):
            c += 4
            continue
        txt = x.text if isinstance(x, Tagged) else x
        mn = txt.split()[0]
        if mn.endswith(":"):
            continue
        if mn.startswith("buffer_"):
            c += 12
        elif mn in ("v_exp_f32", "v_rcp_f32", "v_sqrt_f32"):
            c += 8
        elif mn.startswith("v_mfma"):
            c += 24
        else:
            c += 4
    return c


SCC_RD = ("s_cselect", "s_addc", "s_subb", "s_cbranch_scc")
SCC_NOWR = ("s_mov", "s_movk", "s_mul_i32", "s_cselect", "s_waitcnt", "s_barrier", "s_nop", "s_cbranch", "s_branch", "s_load", "s_memtime", "s_getpc")


def atomize(lst):
    txt = [x if isinstance(x, str) else (x.text if isinstance(x, Tagged) else "") for x in lst]
    live_in = [False] * len(lst)
    live = False
    for k in range(len(lst) - 1, -1, -1):
        t = txt[k]
        if t.startswith(SCC_RD):
            live = True
        elif t.startswith("s_") and not t.startswith(SCC_NOWR):
            live = False
        live_in[k] = live
    atoms = []
    inbr = None
    for k, x in enumerate(lst):
        t = txt[k]
        if atoms and (live_in[k] or inbr is not None):
            atoms[-1].append(x)
        else:
            atoms.append([x])
        if t.startswith("s_cbranch"):
            inbr = t.split()[1] + ":"
        elif inbr is not None and t == inbr:
            inbr = None
    return atoms


class Q:
    def __init__(s):
        s.items = []

    def add(s, atoms):
        s.items += list(atoms)

    def fill(s, A, budget):
        while s.items and (cost(s.items[0]) <= budget):
            at = s.items.pop(0)
            budget -= cost(at)
            A(at)
        return budget

    def force(s, A):
        if s.items:
            A(s.items.pop(0))

    def flush(s, A):
        while s.items:
            A(s.items.pop(0))

    def has(s, tags):
        return any(any(isinstance(x, Tagged) and x.tag in tags for x in at) for at in s.items)


class G:
    def __init__(self, ts="", opt=None):
        self.a = Asm()
        self.ts = ts
        self.o = dict(budget=24)
        self.o.update(opt or {})
        self.nlabel = 0
        self.tsn = 0
        self.tsnames = []

    def label(self, s):
        self.nlabel += 1
        return f"L_{s}_{self.nlabel}"

    def stamp(self, name, cls="m"):
        if cls not in self.ts:
            return
        n = self.tsn
        self.tsn += 1
        assert n < 30
        self.tsnames.append(name)
        self.a("s_memtime s[98:99]")
        self.a("s_waitcnt lgkmcnt(0)")
        self.a(f"v_writelane_b32 v{self.vTS}, s98, {n}")

    def mix(self, atoms, q, every):
        acc = 0
        for at in atoms:
            if not isinstance(at, list):
                at = [at]
            self.a(at)
            acc += cost(at)
            if acc >= every and q.items:
                q.force(self.a)
                acc = 0

    def build(self):
        a = self.a
        O = self.o
        sW, sRB, sC, sRG, sCG = 3, 4, 5, 6, 7
        SX, SWS, SP1, SP2, SP3, SH1, SDBG, SWD, SWO, SOUT, SQ2 = ("s[8:11]", "s[12:15]", "s[16:19]", "s[20:23]", "s[24:27]", "s[28:31]", "s[32:35]",
                                                                  "s[36:39]", "s[40:43]", "s[44:47]", "s[84:87]")
        sKL = 48
        sSTR1 = 55
        sWB = 56
        sT0, sT1, sT2, sT3 = 57, 58, 59, 60
        sTYPEC = 61
        sPAIR1, sPAIR3, sL1, sL2 = 62, 63, 88, 89
        sW1off, sW2off, sW3off = 90, 91, 0
        sSO = 93
        sSPIN = 94
        sID = 95
        sH0, sH1o = 96, 97
        sD6, sD24 = 100, 101
        sLEAD = 92
        sTB, sJ = 70, 71
        P = 64
        KBASE = 7 * SLOT
        GSK, GSV = 3072, 3104
        VBASE = KBASE + 8 * GSK

        vL = 1
        vXo = [2, 3, 4, 5]
        vW1o = [6, 7, 8, 9]
        vW2o = [10, 11, 12, 13]
        vW3o = [14, 15, 16, 17]
        vXr = [[18 + 4 * k + q for q in range(4)] for k in range(3)]
        vWr = [[30 + 2 * k + u for u in range(2)] for k in range(3)]
        vW1r = [36, 37, 38]
        vFlag, vQst, vL16, vHalf = 39, 40, 41, 42
        self.vTS = 43
        vK0 = [44, 45]; vK1 = [46, 47]; vINV = [48, 49]; vRS = [50, 51]
        t0, t1, t2, t3, t4, t5 = 52, 53, 54, 55, 56, 57
        vSR, vL31, tS, tB, vDbg, vZero, vPoll = 58, 59, 60, 61, 62, 63, 64
        vPv = 66
        vOOB, vOne = 65, 77
        vW2d = [70, 71, 72, 73]
        vKV = [74, 75, 76]
        WF = 80
        ACC2, ACC1, ACC3 = 96, 128, 192
        vBp = [18, 22]
        vAp3 = [26, 2]
        QF = 6

        def acc(base, u, t):
            r = base + (u * 2 + t) * 16
            return f"v[{r}:{r+15}]", r

        def xfrag(ks, t):
            r = (ks * 2 + t) * 4
            return f"a[{r}:{r+3}]"

        def win(addr):
            return addr // 65536, addr % 65536

        def dma_item(kind, idx, slot):
            base = slot * SLOT
            if kind == "X":
                pre = [f"s_lshl_b32 s{sSO}, s{sKL+idx}, 7"]
                vo, srd = vXo, SX
            elif kind == "a":
                pre = [f"s_mul_i32 s{sSO}, s{sKL+idx}, s{sSTR1}", f"s_add_u32 s{sSO}, s{sSO}, s{sW1off}"]
                vo, srd = vW1o, SP1
            elif kind == "c":
                pre = [f"s_mul_i32 s{sSO}, s{sKL+idx}, {64*3584}", f"s_add_u32 s{sSO}, s{sSO}, s{sW3off}"]
                vo, srd = vW3o, SP3
            elif kind == "b":
                k0 = f"s{sKL+2*idx}"
                k1 = f"s{sKL+2*idx+1}" if 2 * idx + 1 < 7 else "64"
                pre = [f"s_cmp_eq_u32 s{sCG}, 0", f"s_cselect_b32 s{sSO}, {k0}, {k1}", f"s_mul_i32 s{sSO}, s{sSO}, {64*2688}",
                       f"s_add_u32 s{sSO}, s{sSO}, s{sW2off}"]
                vo, srd = vW2o, SP2
            elif kind == "d":
                n, g = idx >> 1, idx & 1
                if n < 6:
                    pre = [f"s_add_u32 s{sSO}, s{sD6}, {([0,2,4,1,3,5][n]*64 + 32*g)*896}"]
                else:
                    pre = [f"s_add_u32 s{sSO}, s{sD24}, {32*g*896}"]
                vo, srd = vW2d, SWD
            elif kind == "e":
                pre = [f"s_mul_i32 s{sSO}, s{sW}, {32*896}", f"s_add_u32 s{sSO}, s{sSO}, {128*idx*896}"]
                vo, srd = vW2d, SWO
            pre = [f"s_add_u32 m0, s{sWB}, {base}"] + pre
            tag = f"{kind}{idx}"
            return [(pre if o == 0 else []) + [Tagged(f"buffer_load_dwordx4 v{vo[o]}, {srd}, s{sSO} offen offset:{o*1024} lds", tag)] for o in range(4)]

        a(".p2align 8")
        a(f"{KNAME}:")
        if self.ts:
            a("s_memrealtime s[96:97]")
            a("s_memtime s[98:99]")
        a(f"s_load_dwordx16 s[{P}:{P+15}], s[0:1], 0")
        a(f"s_load_dwordx4 s[{P+16}:{P+19}], s[0:1], 64")
        a("s_cmp_ge_u32 s2, 256")
        a("s_cbranch_scc1 L_end")
        a("s_getpc_b64 s[84:85]")
        a("L_pc:")
        a("s_mov_b32 s86, L_codeend-L_pc")
        a("s_mov_b32 s87, 0x20000")
        a(f"v_lshlrev_b32 v{t5}, 7, v0")
        a(f"s_bfe_u32 s{sT0}, s2, 0x30003")
        a(f"s_lshl_b32 s{sT0}, s{sT0}, 12")
        a(f"v_cmp_gt_u32 vcc, 32, v0")
        a(f"s_and_saveexec_b64 s[{sT2+1}:{sT2+2}], vcc")
        a(f"s_cbranch_execz L_nopf")
        a(Tagged(f"buffer_load_dword v79, v{t5}, s[84:87], s{sT0} offen", "pf", maybe=True))
        a("L_nopf:")
        a("s_mov_b64 exec, -1")
        a(f"v_lshrrev_b32 v{t0}, 6, v0")
        a(f"v_and_b32 v{vL}, 63, v0")
        a(f"v_readfirstlane_b32 s{sW}, v{t0}")
        a(f"s_bfe_u32 s{sRB}, s2, 0x30003")
        a(f"s_and_b32 s{sT0}, s2, 1")
        a(f"s_lshl3_add_u32 s{sRB}, s{sT0}, s{sRB}")
        a(f"s_bfe_u32 s{sT1}, s2, 0x20001")
        a(f"s_lshr_b32 s{sT2}, s2, 6")
        a(f"s_lshl2_add_u32 s{sC}, s{sT1}, s{sT2}")
        a(f"s_lshl1_add_u32 s{sT0}, s{sC}, s{sRB}")
        a(f"s_mul_i32 s{sT3}, s{sT0}, 37")
        a(f"s_lshr_b32 s{sT3}, s{sT3}, 8")
        a(f"s_mul_i32 s{sT3}, s{sT3}, 7")
        a(f"s_sub_u32 s{sKL}, s{sT0}, s{sT3}")
        a(f"s_and_b32 s{sRG}, s{sW}, 1")
        a(f"s_lshr_b32 s{sCG}, s{sW}, 1")
        a(f"s_lshl_b32 s{sWB}, s{sW}, 12")
        a(f"v_lshrrev_b32 v{vHalf}, 5, v{vL}")
        a(f"v_and_b32 v{vL31}, 31, v{vL}")
        a(f"v_lshrrev_b32 v{t0}, 3, v{vL}")
        a(f"v_and_b32 v{t1}, 7, v{vL}")
        a(f"v_lshrrev_b32 v{t2}, 4, v{vL}")
        a(f"s_lshl4_add_u32 s{sID}, s{sRB}, s{sC}")
        a(f"s_lshl2_add_u32 s{sT0}, s{sID}, s{sW}")
        a(f"s_lshl_b32 s{sT0}, s{sT0}, 1")
        a(f"v_add_u32 v{vSR}, s{sT0}, v{vHalf}")
        a(f"v_mul_u32_u24 v{t3}, 896, v{vSR}")
        a(f"v_lshl_add_u32 v{t3}, v{vL31}, 5, v{t3}")
        a(f"v_mov_b32 v{tS}, {OOB}")
        a(f"v_cmp_gt_u32 vcc, 28, v{vL31}")
        a(f"s_mul_i32 s{sT3}, s{sT1}, 3")
        a(f"s_add_u32 s{sL2}, s{sT3}, s{sT2}")
        a(f"v_cndmask_b32 v{tB}, v{tS}, v{t3}, vcc")
        a(f"s_lshl_b32 s{sPAIR1}, s{sL2}, 1")
        a(f"s_add_u32 s{sPAIR3}, s{sPAIR1}, 1")
        a(f"s_lshl1_add_u32 s{sL1}, s{sT1}, 13")
        a(f"s_cmp_eq_u32 s{sT1}, 0")
        a(f"s_cselect_b32 s{sL1}, 12, s{sL1}")
        a(f"s_add_u32 s{sT0}, s{sT1}, 24")
        a(f"s_add_u32 s{sT3}, s{sL1}, s{sCG}")
        a(f"s_movk_i32 s{sSTR1}, 3584")
        a(f"s_cmp_eq_u32 s{sT2}, 3")
        a(f"s_cselect_b32 s{sTYPEC}, 1, 0")
        a(f"s_cselect_b32 s{sPAIR3}, s{sT0}, s{sPAIR3}")
        a(f"s_cselect_b32 s{sL2}, 14, s{sL2}")
        a(f"s_cselect_b32 s{sT3}, s{sT3}, s{sPAIR1}")
        a(f"s_cselect_b32 s{sSTR1}, 2688, s{sSTR1}")
        a(f"s_lshl_b32 s{sT3}, s{sT3}, 7")
        a(f"v_and_b32 v{t3}, 1, v{t2}")
        a(f"v_lshlrev_b32 v{t3}, 1, v{t3}")
        a(f"v_xor_b32 v{t3}, v{t1}, v{t3}")
        a(f"s_lshl_b32 s{sT1}, s{sCG}, 2")
        a(f"v_xor_b32 v{t4}, s{sT1}, v{t3}")
        a(f"v_mul_lo_u32 v{vW1o[0]}, v{t0}, s{sSTR1}")
        a(f"v_lshl_add_u32 v{vW1o[0]}, v{t4}, 4, v{vW1o[0]}")
        a(f"s_lshl_b32 s{sT1}, s{sSTR1}, 3")
        a(f"s_sub_u32 s{sT1}, s{sT1}, 1024")
        a(f"v_add_u32 v{vW1o[1]}, s{sT1}, v{vW1o[0]}")
        a(f"v_mul_u32_u24 v{vW3o[0]}, 3584, v{t0}")
        a(f"v_lshl_add_u32 v{vW3o[0]}, v{t4}, 4, v{vW3o[0]}")
        a(f"v_add_u32 v{vW3o[1]}, {8*3584-1024}, v{vW3o[0]}")
        a(f"v_mul_u32_u24 v{vW2o[0]}, 2688, v{t0}")
        a(f"v_lshl_add_u32 v{vW2o[0]}, v{t3}, 4, v{vW2o[0]}")
        a(f"s_lshr_b32 s{sLEAD}, s2, 3\ns_and_b32 s{sSO}, s2, 1\ns_lshl1_add_u32 s{sLEAD}, s{sLEAD}, s{sSO}\ns_add_u32 s{sLEAD}, s{sLEAD}, 1")
        a(f"s_and_b32 s{sSO}, s2, 0xc6\ns_cselect_b32 s{sLEAD}, 0, s{sLEAD}")
        if self.ts:
            a(f"v_mov_b32 v{self.vTS}, 0")
        a("s_waitcnt lgkmcnt(0)")
        if self.ts:
            a(f"v_writelane_b32 v{self.vTS}, s96, 30")
            a(f"v_writelane_b32 v{self.vTS}, s98, 0")
            self.tsn = 1
        self.stamp("karg", "p")
        Ul, Ll = [], []
        uT0, uT1, uT2, uT3 = sH0, sH1o, sSPIN, sD24
        u3, u4, u5, uS, uB = WF, WF + 1, WF + 2, WF + 3, WF + 4

        def flat(x):
            if isinstance(x, (list, tuple)):
                return sum([flat(y) for y in x], [])
            if isinstance(x, str):
                return [l for l in x.split("\n") if l.strip()]
            return [x]

        def U(x):
            Ul.extend(flat(x))

        def Lp(x):
            Ll.extend(flat(x))
        Lp(f"s_mov_b32 s12, s{P+18}\ns_mov_b32 s13, s{P+19}\ns_mov_b32 s14, {WS_BYTES}\ns_mov_b32 s15, 0x20000")
        lnl = self.label("nl")
        Lp(f"s_cmp_eq_u32 s{sLEAD}, 0")
        Lp(f"s_cbranch_scc1 {lnl}")
        Lp(f"v_mov_b32 v{ACC3}, 0\nv_mov_b32 v{ACC3+1}, 0\nv_mov_b32 v{ACC3+2}, 0\nv_mov_b32 v{ACC3+3}, 0")
        Lp(f"s_lshl_b32 s{sSO}, s{sLEAD}, 15\ns_add_u32 s{sSO}, s{sSO}, {MB - 32768}")
        Lp(Tagged(f"buffer_store_dwordx4 v[{ACC3}:{ACC3+3}], v{t5}, {SWS}, s{sSO} offen sc1", "clr", maybe=True))
        Lp(f"{lnl}:")
        ST = ACC3 + 4
        Lp(f"s_mov_b32 s8, s{P}\ns_mov_b32 s9, s{P+1}\ns_mov_b32 s10, {2048*896}\ns_mov_b32 s11, 0x20000")
        Lp(Tagged(f"buffer_load_dwordx4 v[{ST}:{ST+3}], v{tB}, {SX}, 0 offen", "t0x"))
        Lp(Tagged(f"buffer_load_dwordx4 v[{ST+4}:{ST+7}], v{tB}, {SX}, 0 offen offset:16", "t0x"))
        Lp(f"s_cmp_eq_u32 s{sCG}, 0")
        Lp(f"s_cselect_b32 s24, s{P+8}, s{P+10}\ns_cselect_b32 s25, s{P+9}, s{P+11}")
        Lp(f"s_cmp_eq_u32 s{sTYPEC}, 1")
        Lp(f"s_cselect_b32 s16, s{P+2}, s24\ns_cselect_b32 s17, s{P+3}, s25")
        Lp(f"s_add_u32 s16, s16, s{sT3}\ns_addc_u32 s17, s17, 0")
        Lp(f"s_mul_i32 s18, s{sSTR1}, 448\ns_sub_u32 s18, s18, s{sT3}\ns_mov_b32 s19, 0x20000")
        T0A, T0B = 8 * SLOT, 9 * SLOT
        Lp(f"s_lshl1_add_u32 s{sT0}, s{sRB}, s{sRG}\ns_lshl_b32 s{sT0}, s{sT0}, 4")
        Lp(f"s_lshl2_add_u32 s{sT2}, s{sCG}, s{sRG}\ns_lshl_b32 s{sT2}, s{sT2}, 11")
        Lp(f"s_add_u32 m0, s{sT2}, {T0A}")
        Lp(f"s_mul_i32 s{sSO}, s{sT0}, s{sSTR1}")
        for o in range(2):
            Lp(Tagged(f"buffer_load_dwordx4 v{vW1o[o]}, {SP1}, s{sSO} offen offset:{o*1024} lds", "t0"))
        Lp(f"s_lshl_b32 s{sT3}, s{sPAIR3}, 7")
        Lp(f"s_add_u32 s24, s24, s{sT3}\ns_addc_u32 s25, s25, 0")
        Lp(f"s_sub_u32 s26, {448*3584}, s{sT3}\ns_mov_b32 s27, 0x20000")
        Lp(f"s_add_u32 m0, s{sT2}, {T0A+4096}")
        Lp(f"s_mul_i32 s{sSO}, s{sT0}, 3584")
        for o in range(2):
            Lp(Tagged(f"buffer_load_dwordx4 v{vW3o[o]}, {SP3}, s{sSO} offen offset:{o*1024} lds", "t0"))
        Lp(f"s_lshl_b32 s{sT3}, s{sL2}, 7")
        Lp(f"s_add_u32 s20, s{P+2}, s{sT3}\ns_addc_u32 s21, s{P+3}, 0")
        Lp(f"s_sub_u32 s22, {448*2688}, s{sT3}\ns_mov_b32 s23, 0x20000")
        Lp(f"s_lshl_b32 s{sT2}, s{sW}, 10")
        Lp(f"s_add_u32 m0, s{sT2}, {T0B}")
        Lp(f"s_lshl2_add_u32 s{sT0}, s{sRB}, s{sW}\ns_mul_i32 s{sSO}, s{sT0}, {8*2688}")
        Lp(Tagged(f"buffer_load_dwordx4 v{vW2o[0]}, {SP2}, s{sSO} offen lds", "t0"))
        Lp(f"s_mul_i32 s{sT0}, s{sT0}, {32*896}")
        Lp(f"v_mul_u32_u24 v{t3}, 896, v{t0}")
        Lp(f"v_add_u32 v{t3}, s{sT0}, v{t3}")
        Lp(f"v_xor_b32 v{t4}, v{t1}, v{t2}")
        Lp(f"v_lshl_add_u32 v{vXo[0]}, v{t4}, 4, v{t3}")
        Lp(f"v_xor_b32 v{t4}, 4, v{t4}")
        Lp(f"v_lshl_add_u32 v{vXo[1]}, v{t4}, 4, v{t3}")
        Lp(f"v_add_u32 v{vXo[1]}, {8*896-1024}, v{vXo[1]}")
        Lp(f"v_add_u32 v{vXo[2]}, {2*(8*896-1024)}, v{vXo[0]}")
        Lp(f"v_add_u32 v{vXo[3]}, {2*(8*896-1024)}, v{vXo[1]}")
        Lp(dma_item("X", 0, 0))
        Lp(f"v_add_u32 v{vW1o[2]}, s{sT1}, v{vW1o[1]}")
        Lp(f"v_add_u32 v{vW1o[3]}, s{sT1}, v{vW1o[2]}")
        Lp(f"s_mul_i32 s{sW1off}, s{sSTR1}, s{sRG}\ns_lshl_b32 s{sW1off}, s{sW1off}, 5")
        Lp(f"s_lshl_b32 s{sSTR1}, s{sSTR1}, 6")
        Lp(dma_item("a", 0, 1))
        for i in range(1, 7):
            U(f"s_add_u32 s{sKL+i}, s{sKL+i-1}, 1")
            U(f"s_cmp_eq_u32 s{sKL+i}, 7")
            U(f"s_cselect_b32 s{sKL+i}, 0, s{sKL+i}")
        U(f"v_lshlrev_b32 v{vL16}, 4, v{vL}")
        U(f"s_mul_i32 s{sW2off}, s{sRG}, {32*2688}\ns_mul_i32 s{sW3off}, s{sRG}, {32*3584}")
        for o in range(1, 4):
            if o > 1:
                U(f"v_add_u32 v{vW3o[o]}, {o*(8*3584-1024)}, v{vW3o[0]}")
            U(f"v_add_u32 v{vW2o[o]}, {o*(8*2688-1024)}, v{vW2o[0]}")
        U(f"v_bfe_u32 v{u3}, v{vL}, 1, 3")
        U(f"v_xor_b32 v{u3}, v{u3}, v{vHalf}")
        U(f"s_lshl_b32 s{uT0}, s{sRG}, 13")
        U(f"v_lshlrev_b32 v{u4}, 7, v{vL31}\nv_add_u32 v{u4}, s{uT0}, v{u4}")
        for q in range(4):
            U(f"v_xor_b32 v{u5}, {2*q}, v{u3}")
            U(f"v_lshl_add_u32 v{vXr[0][q]}, v{u5}, 4, v{u4}")
            U(f"v_add_u32 v{vXr[1][q]}, 0x10000, v{vXr[0][q]}")
            U(f"v_add_u32 v{vXr[2][q]}, 0x20000, v{vXr[0][q]}")
        U(f"v_and_b32 v{uS}, 1, v{t2}")
        U(f"v_bfe_u32 v{u3}, v{vL}, 2, 2")
        U(f"v_lshl_add_u32 v{u3}, v{vHalf}, 3, v{u3}")
        U(f"v_lshlrev_b32 v{u3}, 7, v{u3}")
        U(f"v_and_b32 v{u4}, 3, v{vL}")
        U(f"v_lshl_add_u32 v{uB}, v{u4}, 3, v{u3}")
        U(f"v_bfe_u32 v{u3}, v{vL}, 3, 1")
        U(f"v_lshl_or_b32 v{u3}, v{uS}, 1, v{u3}")
        U(f"v_lshl_add_u32 v{u4}, v{uS}, 13, v{uB}")
        U(f"s_lshl_b32 s{uT0}, s{sCG}, 1")
        for u in range(2):
            if u: U(f"s_add_u32 s{uT0}, s{uT0}, 1")
            U(f"v_xor_b32 v{u5}, s{uT0}, v{u3}")
            U(f"v_lshl_add_u32 v{vWr[0][u]}, v{u5}, 5, v{u4}")
            U(f"v_add_u32 v{vWr[1][u]}, 0x10000, v{vWr[0][u]}")
            U(f"v_add_u32 v{vWr[2][u]}, 0x20000, v{vWr[0][u]}")
        U(f"v_xor_b32 v{u5}, s{sCG}, v{u3}")
        U(f"v_lshl_add_u32 v{vW1r[0]}, v{u5}, 5, v{uB}")
        U(f"v_add_u32 v{vW1r[1]}, 0x10000, v{vW1r[0]}")
        U(f"v_add_u32 v{vW1r[2]}, 0x20000, v{vW1r[0]}")
        U(f"s_lshl1_add_u32 s{uT0}, s{sRB}, s{sRG}\ns_lshl_b32 s{uT0}, s{uT0}, 9")
        U(f"v_lshlrev_b32 v{u3}, 3, v{vL31}\nv_add_u32 v{u3}, s{uT0}, v{u3}")
        U(f"v_lshl_add_u32 v{vQst}, v{vHalf}, 14, v{u3}")
        U(f"s_and_b32 s{uT0}, s{sW}, 1\ns_lshl_b32 s{uT0}, s{uT0}, 3")
        U(f"v_add_u32 v{u3}, s{uT0}, v{vL}")
        U(f"s_add_u32 s{uT1}, s{sRB}, 16\ns_lshl_b32 s{uT2}, s{sRB}, 15\ns_lshl_b32 s{uT3}, s{sC}, 11")
        U(f"s_cmp_eq_u32 s{sCG}, 0")
        U(f"s_cselect_b32 s{uT1}, s{sC}, s{uT1}\ns_cselect_b32 s{uT2}, s{uT2}, s{uT3}\ns_cselect_b32 s{uT0}, 11, 15")
        U(f"s_lshr_b32 s{uT3}, s{uT1}, 3\ns_lshl_b32 s{uT3}, s{uT3}, 7\ns_and_b32 s{uT1}, s{uT1}, 7\ns_add_u32 s{uT1}, s{uT1}, s{uT3}\ns_add_u32 s{uT1}, s{uT1}, s{uT2}\ns_add_u32 s{uT1}, s{uT1}, {MB}")
        U(f"v_lshlrev_b32 v{u3}, s{uT0}, v{u3}\nv_add_u32 v{u3}, s{uT1}, v{u3}")
        U(f"v_mov_b32 v{vOOB}, {OOB}\nv_mov_b32 v{vOne}, 1")
        U(f"v_cmp_gt_u32 vcc, 8, v{vL}")
        U(f"s_lshl_b32 s{uT0}, s{sID}, 11\ns_lshl_b32 s{uT1}, s{sW}, 7\ns_add_u32 s{uT0}, s{uT0}, s{uT1}\ns_add_u32 s{uT0}, s{uT0}, {MB}")
        U(f"v_cndmask_b32 v{vFlag}, v{vOOB}, v{u3}, vcc")
        U(f"v_mov_b32 v{vPoll}, s{uT0}")
        U(f"v_and_b32 v{vZero}, 15, v{vL}\nv_lshlrev_b32 v{vZero}, 4, v{vZero}")
        U(f"s_mov_b32 s32, s{P+16}\ns_mov_b32 s33, s{P+17}\ns_mov_b32 s34, 256\ns_mov_b32 s35, 0x20000")
        U(f"s_mov_b32 s28, s{P+18}\ns_mov_b32 s29, s{P+19}\ns_mov_b32 s31, 0x20000")
        U(f"s_cmp_eq_u32 s{sTYPEC}, 1\ns_cselect_b32 s30, 0, {WS_BYTES}")
        U(f"s_mov_b32 s84, s{P+18}\ns_mov_b32 s85, s{P+19}\ns_mov_b32 s87, 0x20000")
        U(f"s_cmp_eq_u32 s{sC}, 3\ns_cselect_b32 s86, {WS_BYTES}, s30")
        U(f"s_and_b32 s{uT0}, s2, 7\ns_bfe_u32 s{uT1}, s2, 0x20003\ns_lshl2_add_u32 s{sTB}, s{uT0}, s{uT1}\ns_lshr_b32 s{sJ}, s2, 5")
        U(f"s_lshl_b32 s{uT0}, s{sJ}, 7")
        U(f"s_add_u32 s36, s{P+12}, s{uT0}\ns_addc_u32 s37, s{P+13}, 0\ns_sub_u32 s38, {1792*896}, s{uT0}\ns_mov_b32 s39, 0x20000")
        U(f"s_add_u32 s40, s{P+4}, s{uT0}\ns_addc_u32 s41, s{P+5}, 0\ns_sub_u32 s42, {448*896}, s{uT0}\ns_mov_b32 s43, 0x20000")
        U(f"s_mov_b32 s44, s{P+14}\ns_mov_b32 s45, s{P+15}\ns_mov_b32 s46, {2048*896}\ns_mov_b32 s47, 0x20000")
        U(f"s_mul_i32 s{sD6}, s{sW}, {6*64*896}\ns_mul_i32 s{sD24}, s{sW}, {64*896}\ns_add_u32 s{sD24}, s{sD24}, {24*64*896}")
        U(f"v_lshlrev_b32 v{u3}, 2, v{uS}\nv_xor_b32 v{u3}, v{u3}, v{t1}")
        U(f"v_mul_u32_u24 v{u4}, 896, v{t0}")
        U(f"v_lshl_add_u32 v{vW2d[0]}, v{u3}, 4, v{u4}")
        for o in range(1, 4):
            U(f"v_add_u32 v{vW2d[o]}, {o*(8*896-1024)}, v{vW2d[0]}")
        for b in range(3):
            U(f"s_add_u32 s{uT0}, s{sRB}, {b}\ns_cmp_ge_u32 s{uT0}, 2\ns_cselect_b32 s{uT0}, 0, {OOB}\nv_add_u32 v{vKV[b]}, s{uT0}, v{vL16}")

        def poll_check(tag, cmp, reload):
            lok, lsp = self.label("ok"), self.label("spin")

            def f(A):
                A.wait("vm", tag)
                A(cmp)
                A(f"s_cbranch_vccz {lok}")
                A.maybe_begin()
                A(f"s_mov_b32 s{sSPIN}, 0")
                A(f"{lsp}:")
                A(reload)
                A(f"s_add_u32 s{sSPIN}, s{sSPIN}, 1")
                A("s_waitcnt vmcnt(0)")
                A(cmp)
                A(f"s_cmp_gt_u32 s{sSPIN}, 0x20000")
                A(f"s_cbranch_scc1 {lok}")
                A(f"s_cbranch_vccnz {lsp}")
                A.maybe_end()
                A(f"{lok}:")
            return f

        def push(vaddr, vval=None):
            return [f"buffer_store_byte v{vOne if vval is None else vval}, v{vaddr}, {SWS}, 0 offen sc1"]

        dbg_load = f"buffer_load_dword v{vDbg}, v{vZero}, {SDBG}, 0 offen sc1"
        poll_load = f"buffer_load_dwordx4 v[{vPv}:{vPv+3}], v{vPoll}, {SWS}, 0 offen sc1"

        def poll_cmp(mask, hi=0):
            r = vPv + 2 * hi
            return [f"v_and_b32 v{t0}, v{r}, v{r+1}", f"v_and_b32 v{t0}, {mask}, v{t0}", f"v_cmp_ne_u32 vcc, {mask}, v{t0}"]
        M1, M2 = 0x01010101, 0x02020202

        def f_epi(base, srd, s_off, temps, packed, tag, tiles=((0, 0), (0, 1), (1, 0), (1, 1))):
            J = []
            for (u, t) in tiles:
                _, r = acc(base, u, t)
                T = temps
                if not packed:
                    for j in range(0, 8, 2):
                        g0, g1, b0, b1 = r + j, r + j + 1, r + 8 + j, r + 9 + j
                        x0, x1 = T[0], T[1]
                        J.append([f"v_mul_f32 v{x0}, v{g0}, v{g0}", f"v_mul_f32 v{x1}, v{g1}, v{g1}"])
                        J.append([f"v_fma_f32 v{x0}, v{x0}, v{vK1[t]}, v{vK0[t]}"])
                        J.append([f"v_fma_f32 v{x1}, v{x1}, v{vK1[t]}, v{vK0[t]}"])
                        J.append([f"v_mul_f32 v{x0}, v{x0}, v{g0}", f"v_mul_f32 v{x1}, v{x1}, v{g1}"])
                        J.append([f"v_exp_f32 v{x0}, v{x0}"])
                        J.append([f"v_exp_f32 v{x1}, v{x1}"])
                        J.append([f"v_mul_f32 v{g0}, v{g0}, v{b0}", f"v_mul_f32 v{g1}, v{g1}, v{b1}"])
                        J.append([f"v_fma_f32 v{x0}, v{x0}, v{vINV[t]}, v{vINV[t]}"])
                        J.append([f"v_fma_f32 v{x1}, v{x1}, v{vINV[t]}, v{vINV[t]}"])
                        J.append([f"v_rcp_f32 v{x0}, v{x0}"])
                        J.append([f"v_rcp_f32 v{x1}, v{x1}"])
                        J.append([f"v_mul_f32 v{g0}, v{g0}, v{x0}"])
                        J.append([f"v_mul_f32 v{g1}, v{g1}, v{x1}"])
                        J.append([f"v_cvt_pk_bf16_f32 v{r + 8 + j//2}, v{g0}, v{g1}"])
                        T = T[2:] + T[:2]
                else:
                    X = temps[0]
                    pr = lambda x: f"v[{x}:{x+1}]"
                    for j in range(0, 8, 2):
                        J.append([f"v_pk_mul_f32 {pr(X+j)}, {pr(r+j)}, {pr(r+j)}"])
                    for j in range(0, 8, 2):
                        J.append([f"v_pk_fma_f32 {pr(X+j)}, {pr(X+j)}, {pr(vPK1[t])}, {pr(vPK0[t])}"])
                    for j in range(0, 8, 2):
                        J.append([f"v_pk_mul_f32 {pr(X+j)}, {pr(X+j)}, {pr(r+j)}"])
                    for j in range(8):
                        J.append([f"v_exp_f32 v{X+j}, v{X+j}"])
                    for j in range(0, 8, 2):
                        J.append([f"v_pk_mul_f32 {pr(r+j)}, {pr(r+j)}, {pr(r+8+j)}"])
                    for j in range(0, 8, 2):
                        J.append([f"v_pk_fma_f32 {pr(X+j)}, {pr(X+j)}, {pr(vPINV[t])}, {pr(vPINV[t])}"])
                    for j in range(8):
                        J.append([f"v_rcp_f32 v{X+j}, v{X+j}"])
                    for j in range(0, 8, 2):
                        J.append([f"v_pk_mul_f32 {pr(r+j)}, {pr(r+j)}, {pr(X+j)}"])
                    for j in range(0, 8, 2):
                        J.append([f"v_cvt_pk_bf16_f32 v{r + 8 + j//2}, v{r+j}, v{r+j+1}"])
                J.append([Tagged(f"buffer_store_dwordx4 v[{r+8}:{r+11}], v{vL16}, {srd}, s{s_off[t]} offen offset:{u*1024} sc1", tag)])
            return J

        def q_epi_tile(r, t, sgA, sgB, srd, tag):
            J = []
            for i in range(16):
                J.append([f"v_mul_f32 v{r+i}, v{r+i}, v{vRS[t]}"])
            for i in range(8):
                J.append([f"v_cvt_pk_bf16_f32 v{r+i}, v{r+2*i}, v{r+2*i+1}"])
            for jj in range(4):
                sg = sgA if jj < 2 else sgB
                pre = [f"s_add_u32 s{sT3}, s{sg}, {2*16384}"] if jj & 1 else []
                so = sT3 if jj & 1 else sg
                J.append(pre + [Tagged(f"buffer_store_dwordx2 v[{r+2*jj}:{r+2*jj+1}], v{vQst}, {srd}, s{so} offen offset:{t*256} sc1", tag)])
            return J

        dmaq, jobq = Q(), Q()
        state = {"n": 0, "buf": 0}
        slot_of = {"X0": 0, "a0": 1}
        pending = []
        for i in range(1, 7):
            pending += [("X", i), ("a", i)]
        pending += [("b", i) for i in range(4)] + [("c", i) for i in range(7)] + [("d", i) for i in range(7)]
        free = [2, 3, 4, 5, 6, 7]
        chunks = [("a", i) for i in range(7)] + [("b", i) for i in range(4)] + [("c", i) for i in range(7)]

        def release(n):
            if n >= 2:
                k, i = chunks[n - 2]
                free.append(slot_of[f"{k}{i}"])
                if k == "a":
                    free.append(slot_of[f"X{i}"])
            if n == 0:
                free.extend([8, 9])

        def schedule_dma(maxitems):
            cnt = 0
            while pending and free and cnt < maxitems:
                k, i = pending[0]
                ok = [x for x in free if x < 7] if (k == "d" or (k == "c" and i >= 4)) else sorted(free, reverse=True)
                if not ok:
                    break
                pending.pop(0)
                s = ok[0]
                free.remove(s)
                slot_of[f"{k}{i}"] = s
                dmaq.add(dma_item(k, i, s))
                cnt += 1

        def wbuf(buf, lo, n):
            r = 224 + buf * 8 + lo
            return f"a[{r}:{r+n-1}]"

        def wreads(kind, ks, g):
            buf = g % 3
            if kind in ("a", "c"):
                wk, off = win(slot_of[f"{kind}{ks//4}"] * SLOT)
                off += (ks % 4) * 2048
                return [Tagged(f"ds_read_b64_tr_b16 {wbuf(buf, 4*u+2*e, 2)}, v{vWr[wk][u]} offset:{off+e*512}", f"w{g}") for u in range(2) for e in range(2)]
            wk, off = win(slot_of[f"b{ks//8}"] * SLOT)
            off += (ks % 8) * 2048
            return [Tagged(f"ds_read_b64_tr_b16 {wbuf(buf, 2*e, 2)}, v{vW1r[wk]} offset:{off+e*512}", f"w{g}") for e in range(2)]

        def xreads(ks):
            wk, off = win(slot_of[f"X{ks//4}"] * SLOT)
            return [Tagged(f"ds_read_b128 {xfrag(ks, t)}, v{vXr[wk][ks % 4]} offset:{off + t*4096}", f"w{ks}") for t in range(2)]

        def barrier(n):
            k, i = chunks[n]
            tags = [f"{k}{i}"] + ([f"X{i}"] if k == "a" else [])
            assert all(t in slot_of for t in tags), tags
            while dmaq.has(tags):
                dmaq.force(a)
            if n in precheck:
                a(precheck[n])
            a.wait("vm", *(tags + prebar.get(n, [])))
            a("s_barrier")
            release(n)

        hooks = {}
        prebar = {}
        precheck = {}
        rate = O.get("rate", {})

        seq = [("a", k) for k in range(28)] + [("b", k) for k in range(28)] + [("c", k) for k in range(28)]

        def chunk_of(g):
            k, ks = seq[g]
            return {"a": ks // 4, "b": 7 + ks // 8, "c": 11 + ks // 4}[k]

        def reads_for(g):
            k, ks = seq[g]
            r = wreads(k, ks, g)
            if k == "a":
                r = r[:2] + xreads(ks) + r[2:]
            return r

        def run_pass(kind, base, first_c, dma_gaps):
            nu = 1 if kind == "b" else 2
            g0 = {"a": 0, "b": 28, "c": 56}[kind]
            for ks in range(28):
                g = g0 + ks
                buf = g % 3
                mf = []
                for u in range(nu):
                    for t in range(2):
                        d, _ = acc(base, u, t)
                        c = first_c(u, t) if ks == 0 else d
                        mf.append(f"v_mfma_f32_32x32x16_bf16 {d}, {wbuf(buf, 4*u, 4)}, {xfrag(ks, t)}, {c}")
                a.wait("lgkm", f"w{g}")
                nxt = []
                for gi, m in enumerate(mf):
                    a(m)
                    budget = O["budget"] - (4 if gi == len(mf) - 1 else 0)
                    full = budget
                    if gi == 0 and g + 2 < 84:
                        n = chunk_of(g + 2)
                        if n != chunk_of(g + 1):
                            state["n"] = n
                            barrier(n)
                            budget -= 8
                            schedule_dma(rate.get(n, 2))
                            if n in hooks:
                                hooks[n]()
                        nxt = reads_for(g + 2)
                    take = nxt[: (len(nxt) + 1) // 2] if (gi == 0 and len(nxt) > 2) else nxt
                    if gi <= 1:
                        for x in take:
                            a(x)
                            budget -= 4
                        nxt = nxt[len(take):]
                    if gi in dma_gaps(ks) and dmaq.items:
                        at = dmaq.items.pop(0)
                        a(at)
                        budget -= cost(at)
                    if jobq.items and budget >= full - 8 and cost(jobq.items[0]) > budget:
                        jobq.force(a)
                    else:
                        jobq.fill(a, budget)

        gapc = O.get("pgap", 52)
        Ua = Q(); Ua.add(atomize(Ul))
        since = 999
        for at in atomize(Ll):
            isld = any((x.text if isinstance(x, Tagged) else x).startswith("buffer_") for x in at)
            if isld:
                while Ua.items and since < gapc:
                    since += cost(Ua.items[0]); Ua.force(a)
            a(at)
            since = 0 if isld else since + cost(at)
        self.stamp("issue0", "p")
        schedule_dma(4)
        self.mix(Ua.items, dmaq, gapc)
        lns = self.label("ns")
        a(f"s_cmp_eq_u32 s{sLEAD}, 0")
        a(f"s_cbranch_scc1 {lns}")
        a.maybe_begin()
        a.wait("vm", "clr")
        a("s_barrier")
        a([f"v_lshlrev_b32 v{u3}, 10, v0", f"s_lshl_b32 s{sSPIN}, s{sLEAD}, 4", f"s_sub_u32 s{sSPIN}, s{sSPIN}, 16",
           f"buffer_store_dword v{vOne}, v{u3}, {SDBG}, s{sSPIN} offen sc1"])
        a.maybe_end()
        a(f"{lns}:")
        self.stamp("setup", "p")
        FR = ACC3 + 16
        DD = ACC2
        SEL = ACC2 + 20
        u = [ACC2 + 24 + i for i in range(8)]
        s1, s2, tt, tt2 = u[2], u[3], u[4], u[5]
        o0, o1 = u[6], u[7]
        J = []
        J += [f"v_lshrrev_b32 v{u[1]}, 2, v{vL}", f"v_xor_b32 v{u[0]}, v{t2}, v{u[1]}", f"v_and_b32 v{u[0]}, 1, v{u[0]}",
              f"v_cmp_eq_u32 vcc, 0, v{u[0]}", f"v_mov_b32 v{u[1]}, 0x3f803f80", f"v_mov_b32 v{s1}, 0", f"v_mov_b32 v{s2}, 0"]
        J += [f"v_cndmask_b32 v{SEL+i}, 0, v{u[1]}, vcc" for i in range(4)]
        vA1, vA2, vA3 = ACC3 + 56, ACC3 + 57, ACC3 + 58
        J += [f"v_mov_b32 v{tt}, {OOB}", f"v_lshlrev_b32 v{vA1}, 3, v{vSR}", f"v_cmp_eq_u32 vcc, 0, v{vL31}", f"v_lshlrev_b32 v{vA3}, 2, v{vL}",
              f"s_lshl4_add_u32 s{sT2}, s{sC}, s{sRB}", f"v_cndmask_b32 v{vA1}, v{tt}, v{vA1}, vcc", f"v_cmp_gt_u32 vcc, 32, v{vL}",
              f"s_lshl1_add_u32 s{sT2}, s{sT2}, s{sCG}", f"s_mul_i32 s{sT2}, s{sT2}, 640",
              f"v_cndmask_b32 v{vA3}, v{tt}, v{vA3}, vcc", f"v_cndmask_b32 v{vA2}, v{tt}, v{vL16}, vcc", f"s_add_u32 s{sT2}, s{sT2}, {CS}",
              f"s_cmp_eq_u32 s{sRG}, 0", f"s_cselect_b32 s{sT0}, s{sT2}, {OOB}", f"s_cselect_b32 s{sT1}, {OOB}, s{sT2}", f"s_mov_b32 s{sT3}, {STATS}"]
        a(J)
        a.wait("vm", "t0x")
        self.stamp("t0x", "p")
        J = []
        for i in range(8):
            J += [f"v_dot2_f32_bf16 v{s1}, v{ST+i}, v{u[1]}, v{s1}", f"v_dot2_f32_bf16 v{s2}, v{ST+i}, v{ST+i}, v{s2}"]
        J.append([Wait("vm", "t0"), "s_barrier"])
        wk, off = win(T0A)
        srcs = [(vWr[wk][0], off), (vWr[wk][1], off), (vWr[wk][0], off + 4096), (vWr[wk][1], off + 4096), (vW1r[win(T0B)[0]], win(T0B)[1])]
        R = []
        for k2 in range(2):
            for i, (vr, o) in enumerate(srcs):
                r = FR + (k2 * 5 + i) * 4
                R += [Tagged(f"ds_read_b64_tr_b16 v[{r}:{r+1}], v{vr} offset:{o + k2*2048}", f"t0r{k2}"),
                      Tagged(f"ds_read_b64_tr_b16 v[{r+2}:{r+3}], v{vr} offset:{o + k2*2048 + 512}", f"t0r{k2}")]
        red = []
        for m in ("quad_perm:[1,0,3,2]", "quad_perm:[2,3,0,1]", "row_half_mirror", "row_mirror"):
            red.append([f"v_add_f32_dpp v{s1}, v{s1}, v{s1} {m} row_mask:0xf bank_mask:0xf", f"v_add_f32_dpp v{s2}, v{s2}, v{s2} {m} row_mask:0xf bank_mask:0xf"])
        red.append([f"v_mov_b32 v{tt}, v{s1}", f"v_mov_b32 v{tt2}, v{s2}"])
        red.append([f"v_permlane16_swap_b32 v{tt}, v{s1}", f"v_permlane16_swap_b32 v{tt2}, v{s2}"])
        red.append([f"v_add_f32 v{s1}, v{s1}, v{tt}", f"v_add_f32 v{s2}, v{s2}, v{tt2}"])
        for i in range(7):
            J += R[3 * i: 3 * i + 3]
            J.append(red[i])
        fin = [f"v_mul_f32 v{s1}, {f32(1.0/448)}, v{s1}", f"v_mul_f32 v{s2}, {f32(1.0/448)}, v{s2}", f"v_fma_f32 v{s2}, -v{s1}, v{s1}, v{s2}",
               f"v_max_f32 v{s2}, 0, v{s2}", f"v_cvt_pk_bf16_f32 v{o0}, -v{s1}, -v{s1}", f"v_cvt_pk_bf16_f32 v{s2}, v{s2}, v{s2}",
               f"v_and_b32 v{s2}, 0xffff0000, v{s2}", f"v_add_f32 v{s2}, {f32(1e-5)}, v{s2}", f"v_cvt_pk_bf16_f32 v{s2}, v{s2}, v{s2}",
               f"v_and_b32 v{s2}, 0xffff0000, v{s2}", f"v_sqrt_f32 v{s2}, v{s2}", "s_nop 0", f"v_cvt_pk_bf16_f32 v{s2}, v{s2}, v{s2}",
               f"v_and_b32 v{s2}, 0xffff0000, v{s2}", f"v_rcp_f32 v{o1}, v{s2}", "s_nop 0",
               Tagged(f"buffer_store_dwordx2 v[{o0}:{o1}], v{vA1}, {SWS}, s{sT3} offen sc1", "t0s")]
        for k2 in range(2):
            J.append(Wait("lgkm", f"t0r{k2}"))
            for i in range(5):
                r = FR + (k2 * 5 + i) * 4
                d = DD + i * 4
                c = "0" if k2 == 0 else f"v[{d}:{d+3}]"
                J.append(f"v_mfma_f32_16x16x32_bf16 v[{d}:{d+3}], v[{SEL}:{SEL+3}], v[{r}:{r+3}], {c}")
                J += fin[:2]; fin = fin[2:]
        J += fin
        self.mix(J, dmaq, O.get('t0gap', 56))
        self.stamp("t0c", "p")
        barrier(0)
        schedule_dma(2)
        a(reads_for(0))
        a(reads_for(1))
        a([f"v_mov_b32 v{DD+1}, v{DD+4}", f"v_mov_b32 v{DD+2}, v{DD+8}", f"v_mov_b32 v{DD+3}, v{DD+12}"])
        a(Tagged(f"buffer_store_dwordx4 v[{DD}:{DD+3}], v{vA2}, {SWS}, s{sT0} offen sc1", "t0s"))
        a(Tagged(f"buffer_store_dword v{DD+16}, v{vA3}, {SWS}, s{sT1} offen offset:512 sc1", "t0s"))
        self.stamp("start")

        ldb = self.label("db")
        hooks[O.get("h_dbg", 2)] = lambda: jobq.add([[f"v_mov_b32 v{vDbg}, 1", f"s_cmp_lg_u32 s{sW}, 0", f"s_cbranch_scc1 {ldb}", Tagged(dbg_load, "dbg", maybe=True), f"{ldb}:"]])
        precheck[O.get("h_f1", 4)] = poll_check("dbg", f"v_cmp_eq_u32 vcc, 0, v{vDbg}", dbg_load)
        prebar[O.get("h_f1", 4)] = ["t0s"]
        hooks[O.get("h_f1", 4)] = lambda: jobq.add([push(vFlag)])
        CQ, CSG, CST = ACC3, ACC3 + 28, ACC3 + 36
        hooks[O.get("h_p1", 7)] = lambda: jobq.add([[Tagged(poll_load, "poll")]])

        def h_cs():
            J = []
            J.append([f"v_mul_u32_u24 v{t3}, {7*1280}, v{vHalf}", f"v_lshl_add_u32 v{t4}, v{vL31}, 4, v{t3}", f"v_lshl_add_u32 v{t5}, v{vL31}, 2, v{t3}"])
            J.append([f"s_mul_i32 s{sT0}, s{sC}, {16*1280}", f"s_mul_i32 s{sT1}, s{sCG}, 640", f"s_add_u32 s{sT0}, s{sT0}, s{sT1}", f"s_add_u32 s{sT0}, s{sT0}, {CS}"])
            J.append([f"s_add_u32 s{sT1}, s{sT0}, {3*1280}", f"s_add_u32 s{sT2}, s{sT0}, {6*1280}", f"v_and_b32 v{t3}, 0x3fff, v{vQst}", f"s_mov_b32 s{sT3}, {STATS}"])
            for t in range(2):
                J.append([Tagged(f"buffer_load_dwordx2 v[{CST+2*t}:{CST+2*t+1}], v{t3}, {SWS}, s{sT3} offen offset:{t*256} sc1", "cs")])
            for i in range(7):
                so = [sT0, sT1, sT2][i // 3]
                J.append([Tagged(f"buffer_load_dword v{CSG+i}, v{t5}, {SWS}, s{so} offen offset:{(i%3)*1280+512} sc1", "cs1")])
            for i in range(7):
                so = [sT0, sT1, sT2][i // 3]
                J.append([Tagged(f"buffer_load_dwordx4 v[{CQ+4*i}:{CQ+4*i+3}], v{t4}, {SWS}, s{so} offen offset:{(i%3)*1280} sc1", "cs")])
            jobq.add(J)
        hooks[O.get("h_cs", 8)] = h_cs
        precheck[O.get("h_cs", 8)] = poll_check("poll", poll_cmp(M1), poll_load)

        run_pass("a", ACC1, lambda u, t: "0", lambda ks: (2, 3))
        self.stamp("pass1")
        run_pass("b", ACC2, lambda u, t: "0", lambda ks: (1,) if ks % 2 == 0 else ())
        jobq.flush(a)
        self.stamp("pass2")

        C0 = -2.0 * 0.7978845608028654 * 1.4426950408889634
        C1 = C0 * 0.044715
        a(f"s_mov_b32 s{sSPIN}, 0x07060302")

        def split(src, dst, tmp):
            return [f"v_and_b32 v{tmp}, 0xffff0000, v{src}", f"v_sub_f32 v{tmp}, v{src}, v{tmp}", f"v_perm_b32 v{dst}, v{tmp}, v{src}, s{sSPIN}",
                    f"v_and_b32 v{dst+1}, 0xffff0000, v{tmp}", f"v_sub_f32 v{tmp}, v{tmp}, v{dst+1}", f"v_lshrrev_b32 v{dst+1}, 16, v{tmp}",
                    f"v_mov_b32 v{dst+2}, 0", f"v_mov_b32 v{dst+3}, 0"]
        AP = [CQ + 40, CQ + 44, vAp3[0], vAp3[1], CQ + 48]
        a(f"s_lshl2_add_u32 s{sT0}, s{sL2}, s{sCG}\ns_lshl_b32 s{sT0}, s{sT0}, 16\ns_add_u32 s{sT0}, s{sT0}, {QKV}\ns_add_u32 s{sT1}, s{sT0}, {8*16384}")
        a.wait("vm", "cs1")
        for i in range(1, 7):
            a(f"v_add_f32 v{CSG}, v{CSG}, v{CSG+i}")
        for t in range(2):
            for j in range(4):
                a(f"v_mov_b32 v{vBp[t]+j}, v{CST+2*t}")
            a(f"v_mov_b32 v{vRS[t]}, v{CST+2*t+1}")
        a(split(CSG, AP[4], CQ + 52))
        J = []
        for t in range(2):
            J += [f"v_mul_f32 v{vINV[t]}, v{vRS[t]}, v{vRS[t]}", f"v_mul_f32 v{vK0[t]}, {f32(C0)}, v{vRS[t]}", f"v_mul_f32 v{vK1[t]}, {f32(C1)}, v{vRS[t]}",
                  f"v_mul_f32 v{vK1[t]}, v{vK1[t]}, v{vINV[t]}", f"v_rcp_f32 v{vINV[t]}, v{vINV[t]}"]
        for t in range(2):
            d, _ = acc(ACC2, 0, t)
            a(f"v_mfma_f32_32x32x16_bf16 {d}, v[{AP[4]}:{AP[4]+3}], v[{vBp[t]}:{vBp[t]+3}], {d}")
            a(J[5 * t: 5 * t + 5])
        a.wait("vm", "cs")
        for i in range(1, 7):
            for j in range(0, 4, 2):
                a(f"v_pk_add_f32 v[{CQ+j}:{CQ+j+1}], v[{CQ+j}:{CQ+j+1}], v[{CQ+4*i+j}:{CQ+4*i+j+1}]")
        for i in range(4):
            a(split(CQ + i, AP[i], CQ + 52))
        J = []
        for t in range(2):
            J += q_epi_tile(acc(ACC2, 0, t)[1], t, sT0, sT1, SQ2, "q")
        jq = Q(); jq.add(J)
        for u in range(2):
            for t in range(2):
                d, _ = acc(ACC1, u, t)
                a(f"v_mfma_f32_32x32x16_bf16 {d}, v[{AP[u]}:{AP[u]+3}], v[{vBp[t]}:{vBp[t]+3}], {d}")
                jq.fill(a, 28)
        for u in range(2):
            for t in range(2):
                d, _ = acc(ACC3, u, t)
                a(f"v_mfma_f32_32x32x16_bf16 {d}, v[{vAp3[u]}:{vAp3[u]+3}], v[{vBp[t]}:{vBp[t]+3}], 0")
                jq.fill(a, 28)
        jq.flush(a)
        lq = self.label("notC")
        a(f"s_cmp_eq_u32 s{sTYPEC}, 0")
        a(f"s_cbranch_scc1 {lq}")
        a.maybe_begin()
        for u in range(2):
            a(f"s_lshl1_add_u32 s{sT0}, s{sL1}, s{sCG}\ns_lshl_b32 s{sT0}, s{sT0}, 17\ns_add_u32 s{sT0}, s{sT0}, {QKV + 4*u*16384}\ns_add_u32 s{sT1}, s{sT0}, {16*16384}")
            for t in range(2):
                a(q_epi_tile(acc(ACC1, u, t)[1], t, sT0, sT1, SWS, "q"))
        a.maybe_end()
        a(f"{lq}:")

        def hoffs(spair):
            return [f"s_lshl1_add_u32 s{sT0}, s{sRB}, s{sRG}", f"s_mul_i32 s{sT0}, s{sT0}, 112", f"s_lshl1_add_u32 s{sT1}, s{spair}, s{sCG}",
                    f"s_add_u32 s{sT0}, s{sT0}, s{sT1}", f"s_lshl_b32 s{sT0}, s{sT0}, 11", f"s_add_u32 s{sH0}, s{sT0}, {HBUF}", f"s_add_u32 s{sH1o}, s{sH0}, {112*1024}"]
        a(hoffs(sPAIR1))
        self.stamp("mid")
        n_emb = O.get("n_emb", 4)
        tl = ((0, 0), (0, 1), (1, 0), (1, 1))
        jobq.add(f_epi(ACC1, SH1, [sH0, sH1o], [ACC2 + i for i in range(8)], False, "h1", tl[:n_emb]))
        def h_a2():
            jobq.items[0:0] = [
                [f"s_mul_i32 s{sT0}, s{sW}, 12", f"v_add_u32 v{t3}, s{sT0}, v{vL}", f"v_lshrrev_b32 v{t4}, 4, v{t3}", f"s_lshl_b32 s{sT0}, s{sRB}, 4"],
                [f"v_add_u32 v{t3}, s{sT0}, v{t3}", f"v_cmp_gt_u32 s[72:73], 12, v{vL}", f"v_cmp_gt_u32 vcc, 0x100, v{t3}", f"v_lshlrev_b32 v{t3}, 11, v{t3}"],
                [f"v_lshlrev_b32 v{t4}, 8, v{t4}", f"v_sub_u32 v{t3}, v{t3}, v{t4}", "s_and_b64 vcc, vcc, s[72:73]", f"s_lshr_b32 s{sT0}, s{sC}, 3"],
                [f"s_lshl_b32 s{sT0}, s{sT0}, 7", f"s_and_b32 s{sT1}, s{sC}, 7", f"s_add_u32 s{sT0}, s{sT0}, s{sT1}", f"s_add_u32 s{sT0}, s{sT0}, {MB + 8*128}"],
                [f"v_add_u32 v{t3}, s{sT0}, v{t3}", f"v_cndmask_b32 v{vFlag}, v{vOOB}, v{t3}, vcc"],
                [f"v_min_u32 v{t3}, 5, v{vL}", f"s_sub_i32 s{sT0}, 2, s{sRB}", f"s_max_i32 s{sT0}, s{sT0}, 0", f"s_lshl_b32 s{sT0}, s{sT0}, 1"],
                [f"v_max_u32 v{t3}, s{sT0}, v{t3}", f"s_lshl_b32 s{sT0}, s{sID}, 11", f"s_add_u32 s{sT0}, s{sT0}, {MB + 4*128}", f"v_lshl_add_u32 v{vPoll}, v{t3}, 7, s{sT0}"]]
        hooks[12] = h_a2
        prebar[O.get("h_f2", 14)] = ["q"]
        hooks[O.get("h_f2", 14)] = lambda: jobq.items.insert(0, push(vFlag))
        hooks[O.get("h_p2", 17)] = lambda: jobq.items.insert(0, [Tagged(poll_load, "poll2")])
        run_pass("c", ACC3, lambda u, t: acc(ACC3, u, t)[0], lambda ks: (2,) if ks % 2 else (2, 3))
        sys.stderr.write(f"after pass3: jobq left {sum(cost(x) for x in jobq.items)} cycles, dmaq {len(dmaq.items)}, pending {pending}\n")
        dmaq.flush(a)
        jobq.flush(a)
        self.stamp("pass3")

        assert all(x in free for x in (7, 8, 9)), free
        a(poll_check("poll2", poll_cmp(M1), poll_load))
        self.stamp("poll2", "q")
        a([f"s_mul_i32 s{sT0}, s{sC}, 7", f"s_add_u32 s{sT0}, s{sT0}, s{sW}", f"s_lshl_b32 s{sT0}, s{sT0}, 14", f"s_lshl_b32 s{sT1}, s{sRB}, 10",
           f"s_add_u32 s{sT0}, s{sT0}, s{sT1}", f"s_mul_i32 s{sT1}, s{sW}, {GSK}", f"s_mul_i32 s{sT2}, s{sW}, {GSV}"])
        kvq = Q()
        sK0, sK1, sK2, sK3 = 72, 73, 74, 75
        a(f"s_mov_b32 s{sK0}, s{sT0}\ns_mov_b32 s{sK1}, s{sT1}\ns_mov_b32 s{sK2}, s{sT2}")
        for q in range(4):
            sec = 1 if q < 2 else 2
            goff = QKV - 2048 + (sec * 112 + (q & 1) * 4) * 16384
            m0 = f"s_add_u32 m0, s{sK1}, {KBASE + (q & 1) * 4 * GSK}" if q < 2 else f"s_add_u32 m0, s{sK2}, {VBASE + (q & 1) * 4 * GSV}"
            lds = [Tagged(f"buffer_load_dwordx4 v{vKV[b]}, {SWS}, s{sK3} offen offset:{b*1024} sc1 lds", "kv", maybe=bool(q & 1)) for b in range(3)]
            if q & 1:
                lb = self.label("w3")
                kvq.add([[f"s_cmp_eq_u32 s{sW}, 3", f"s_cbranch_scc1 {lb}", m0, f"s_add_u32 s{sK3}, s{sK0}, {goff}"] + lds + [f"{lb}:"]])
            else:
                kvq.add([[m0, f"s_add_u32 s{sK3}, s{sK0}, {goff}"] + lds])
        kvq.add([[f"s_mul_i32 s{sK0}, s{sC}, {7*16384}", f"s_lshl2_add_u32 s{sK1}, s{sRB}, s{sW}", f"s_lshl_b32 s{sK1}, s{sK1}, 8",
                  f"s_add_u32 s{sK0}, s{sK0}, s{sK1}", f"v_lshlrev_b32 v{t3}, 3, v{vL31}", f"v_lshl_add_u32 v{t3}, v{vHalf}, 15, v{t3}"]
                 + sum([[f"s_add_u32 s{sK3}, s{sK0}, {QKV + (4*sidx + e)*16384}",
                         Tagged(f"buffer_load_dwordx2 v[{QF + sidx*4 + e*2}:{QF + sidx*4 + e*2 + 1}], v{t3}, {SWS}, s{sK3} offen sc1", "kv")] for sidx in range(2) for e in range(2)], [])])
        kvq.force(a)
        vPK0 = [ACC2 + 8, ACC2 + 10]; vPK1 = [ACC2 + 12, ACC2 + 14]; vPINV = [ACC2 + 16, ACC2 + 18]
        for t in range(2):
            for (dst, src) in ((vPK0, vK0), (vPK1, vK1), (vPINV, vINV)):
                a(f"v_mov_b32 v{dst[t]}, v{src[t]}\nv_mov_b32 v{dst[t]+1}, v{src[t]}")
        J = []
        if n_emb < 4:
            J += f_epi(ACC1, SH1, [sH0, sH1o], [ACC2], True, "h1", tl[n_emb:])
        J += [hoffs(sPAIR3)]
        J += f_epi(ACC3, SWS, [sH0, sH1o], [ACC2], True, "h3")
        self.mix(J, kvq, 120)
        kvq.flush(a)
        self.stamp("fepi")

        import part2
        part2.emit(self, locals())

        if self.ts:
            a("s_waitcnt vmcnt(0)")
            self.stamp("end")
            a("s_memrealtime s[96:97]")
            a("s_waitcnt lgkmcnt(0)")
            a(f"v_writelane_b32 v{self.vTS}, s96, 31")
            a(f"s_lshl_b32 s{sT0}, s2, 2\ns_add_u32 s{sT0}, s{sT0}, s{sW}\ns_lshl_b32 s{sT0}, s{sT0}, 8\ns_add_u32 s{sT0}, s{sT0}, {TSB}")
            a(f"v_lshlrev_b32 v{t3}, 2, v{vL}")
            a(f"buffer_store_dword v{self.vTS}, v{t3}, {SWS}, s{sT0} offen")
        a("L_end:")
        a("s_endpgm")
        a("L_codeend:")

    def text(self):
        self.build()
        nn = self.a.fix_hazards()
        fx = self.a.fix_alignment()
        sys.stderr.write(f"hazard nops {nn}, align fixed/left {fx}, code bytes {self.a.nbytes()}\n")
        head = open(os.path.join(os.path.dirname(os.path.abspath(__file__)), "..", "cdna_kernels",
                                 "parallel_sum__sliding_block__geglu_ffn__prompt.s.ref")).read().split("; Override")[0]
        s = head
        s += "; @launch grid=(256,1,1) block=(256,1,1) lds=163840\n"
        if self.ts:
            s += "; stamps: " + " ".join(self.tsnames) + "\n"
        s += '.amdgcn_target "amdgcn-amd-amdhsa--gfx950"\n.text\n'
        s += f".globl {KNAME}\n.type {KNAME},@function\n"
        s += self.a.text()
        s += f""".section .rodata,"a"
.p2align 6
.amdhsa_kernel {KNAME}
  .amdhsa_next_free_vgpr 512
  .amdhsa_next_free_sgpr 102
  .amdhsa_accum_offset 256
  .amdhsa_group_segment_fixed_size 0
  .amdhsa_kernarg_size 80
  .amdhsa_user_sgpr_count 2
  .amdhsa_user_sgpr_kernarg_segment_ptr 1
  .amdhsa_system_sgpr_workgroup_id_x 1
.end_amdhsa_kernel
"""
        return s


if __name__ == "__main__":
    import argparse, json
    ap = argparse.ArgumentParser()
    ap.add_argument("-o", default="k.s")
    ap.add_argument("--ts", default="")
    ap.add_argument("--opt", default="{}")
    args = ap.parse_args()
    opt = eval(args.opt)
    open(args.o, "w").write(G(ts=args.ts, opt=opt).text())
```
